```python
import torch

def _softmax(x, axis=-1):
    return torch.softmax(x, dim=axis)
def _gelu(x):
    return torch.nn.functional.gelu(x, approximate="tanh")
def _silu(x):
    return torch.nn.functional.silu(x)
def _sigmoid(x):
    return torch.sigmoid(x)
def _layernorm(x, axis=-1, eps=1e-5):
    m = x.mean(dim=axis, keepdim=True)
    v = x.var(dim=axis, keepdim=True, unbiased=False)
    return (x - m) / torch.sqrt(v + eps)
def _scatter_add(tgt, idx, src, axis=0):
    return tgt.clone().index_add_(axis, idx, src)
def _segment_sum(src, seg, n):
    out = torch.zeros((n,) + src.shape[1:], dtype=src.dtype)
    return out.index_add_(0, seg, src)
def _pad(x, pw):
    flat = tuple(v for pair in reversed(pw) for v in pair)
    return torch.nn.functional.pad(x, flat)

kernel_name = 'gather_scatter__molecular_angular_gemnet__graph'

def setup_inputs():

    _w = (lambda a: (lambda t: t.to(torch.bfloat16) if t.is_floating_point() else t)(torch.as_tensor(a)))
    N, deg, De, L = 10000, 16, 4, 3
    E = N * deg
    T = E * deg
    NR = 8
    dist = torch.rand(E).to(float)
    angle = (torch.rand(T) * torch.pi).to(float)
    centers = torch.linspace(0.0, 1.0, NR).to(float)
    ang_freq = torch.arange(1, L + 1).to(float)
    return {
        "m": _w((lambda *s: torch.randn(*s, dtype=torch.bfloat16) * 0.05)(E, De)),
        "idx_in": _w((lambda lo, hi, *s: torch.randint(lo, hi, s))(0, E, T).to(torch.int64)),
        "idx_out": _w((lambda lo, hi, *s: torch.randint(lo, hi, s))(0, E, T).to(torch.int64)),
        "dist": _w(dist),
        "angle": _w(angle),
        "centers": _w(centers),
        "ang_freq": _w(ang_freq),
        "w_rbf": _w((lambda *s: torch.randn(*s, dtype=torch.bfloat16) * 0.2)(NR, De)),
        "w_sbf": _w((lambda *s: torch.randn(*s, dtype=torch.bfloat16) * 0.2)(NR * L, De)),
        "w_down": _w((lambda *s: torch.randn(*s, dtype=torch.bfloat16) * 0.2)(De, De)),
        "w_up": _w((lambda *s: torch.randn(*s, dtype=torch.bfloat16) * 0.2)(De, De)),
    }

def reference(m, idx_in, idx_out, dist, angle, centers, ang_freq, w_rbf, w_sbf, w_down, w_up):
    E, De = m.shape[0], m.shape[1]
    NR = centers.shape[0]
    L = ang_freq.shape[0]
    rbf = torch.exp(-10.0 * (dist[:, None] - centers[None, :]) ** 2)
    cbf = torch.cos(ang_freq[None, :] * angle[:, None])
    rbf_t = rbf[idx_out]
    sbf = torch.reshape(rbf_t[:, :, None] * cbf[:, None, :], (-1, NR * L))
    x = (m[idx_in] @ w_down) * (sbf @ w_sbf)
    agg = _segment_sum(x, idx_out, E)
    return m + (agg @ w_up) * (rbf @ w_rbf)
```

```python
import sys, argparse

E = 160000
T = 2560000
NB = 256
EPB = 625
NC = 256
CH = 10000

WS_A = 0
WS_G = 16 << 20
WS_RA = 32 << 20
WS_RG = 48 << 20
WS_TAB = 56 << 20
WS_ST = 57 << 20
WS_SIZE = 64 << 20
RSTR = 40960


class Asm:
    def __init__(self):
        self.lines = []
        self.vm = []
        self.lg = []
        self.uid = 0

    def __call__(self, s):
        self.lines.append("  " + s)

    def label(self, s):
        self.lines.append(s + ":")

    def comment(self, s):
        self.lines.append("  ; " + s)

    def newlabel(self, base):
        self.uid += 1
        return "L_%s_%d" % (base, self.uid)

    def vmem(self, s, tag=None):
        self(s)
        self.vm.append(tag)

    def lds(self, s, tag=None):
        self(s)
        self.lg.append(tag)

    def wait_vm(self, tag):
        if tag not in self.vm:
            return
        idx = max(i for i, t in enumerate(self.vm) if t == tag)
        n = len(self.vm) - 1 - idx
        n = min(n, 63)
        self("s_waitcnt vmcnt(%d)" % n)
        self.vm = self.vm[len(self.vm) - n:] if n > 0 else []

    def wait_lg(self, tag):
        if tag not in self.lg:
            return
        idx = max(i for i, t in enumerate(self.lg) if t == tag)
        n = len(self.lg) - 1 - idx
        n = min(n, 15)
        self("s_waitcnt lgkmcnt(%d)" % n)
        self.lg = self.lg[len(self.lg) - n:] if n > 0 else []

    def has_vm(self, tag):
        return tag in self.vm

    def has_lg(self, tag):
        return tag in self.lg

    def wait_all(self, vm=True, lg=True):
        parts = []
        if vm:
            parts.append("vmcnt(0)")
            self.vm = []
        if lg:
            parts.append("lgkmcnt(0)")
            self.lg = []
        self("s_waitcnt " + " ".join(parts))

    def text(self):
        return "\n".join(self.lines) + "\n"


def vr(a, n=1):
    return "v%d" % a if n == 1 else "v[%d:%d]" % (a, a + n - 1)


def sr(a, n=1):
    return "s%d" % a if n == 1 else "s[%d:%d]" % (a, a + n - 1)


def find_div_magic(d, maxq):
    for S in range(8, 25):
        M = ((1 << S) + d - 1) // d
        if M >= (1 << 24) or M * maxq >= (1 << 32):
            continue
        if all(((q * M) >> S) == q // d for q in range(maxq)):
            return M, S
    raise RuntimeError("no magic")


def srd(a, base, lo, hi, off, nrec, stride=0):
    if off is None:
        a("s_mov_b32 s%d, s%d" % (base, lo))
        if stride:
            a("s_or_b32 s%d, s%d, 0x%x" % (base + 1, hi, stride << 16))
        else:
            a("s_mov_b32 s%d, s%d" % (base + 1, hi))
    else:
        a("s_add_u32 s%d, s%d, %s" % (base, lo, off))
        a("s_addc_u32 s%d, s%d, 0" % (base + 1, hi))
        assert not stride
    a("s_mov_b32 s%d, 0x%x" % (base + 2, nrec))
    a("s_mov_b32 s%d, 0x20000" % (base + 3))


def dpp_scan(a, op, v, tmp=None, pk=False):
    steps = ["row_shr:1 row_mask:0xf bank_mask:0xf bound_ctrl:0",
             "row_shr:2 row_mask:0xf bank_mask:0xf bound_ctrl:0",
             "row_shr:4 row_mask:0xf bank_mask:0xf bound_ctrl:0",
             "row_shr:8 row_mask:0xf bank_mask:0xf bound_ctrl:0",
             "row_bcast:15 row_mask:0xa bank_mask:0xf",
             "row_bcast:31 row_mask:0xc bank_mask:0xf"]
    for st in steps:
        a("s_nop 1")
        a("%s_dpp %s, %s, %s %s" % (op, vr(v), vr(v), vr(v), st))


def dpp_reduce_pk_sum(a, vpk, vsum, vt):
    steps = ["row_shr:1 row_mask:0xf bank_mask:0xf bound_ctrl:0",
             "row_shr:2 row_mask:0xf bank_mask:0xf bound_ctrl:0",
             "row_shr:4 row_mask:0xf bank_mask:0xf bound_ctrl:0",
             "row_shr:8 row_mask:0xf bank_mask:0xf bound_ctrl:0",
             "row_bcast:15 row_mask:0xa bank_mask:0xf",
             "row_bcast:31 row_mask:0xc bank_mask:0xf"]
    a("v_mov_b32 %s, 0" % vr(vt))
    for st in steps:
        a("s_nop 1")
        a("v_mov_b32_dpp %s, %s %s" % (vr(vt), vr(vpk), st))
        a("v_add_f32_dpp %s, %s, %s %s" % (vr(vsum), vr(vsum), vr(vsum), st))
        a("s_nop 0")
        a("v_pk_max_u16 %s, %s, %s" % (vr(vpk), vr(vpk), vr(vt)))


def gen_k1(p):
    F = p.F
    NT = 640
    a = Asm()
    name = "gs_part_kernel"
    G_BASE = 4096
    A_BASE = G_BASE + 512 * F
    STEP = NT * 16
    nfill = (1024 * F + STEP - 1) // STEP
    lds_size = A_BASE + nfill * STEP
    lds_size = max(lds_size, p.k1_lds_min)
    nG = (512 * F + STEP - 1) // STEP
    nA = nfill
    st_flags = p.st_flags

    vT16, vT8, vFour = 1, 2, 3
    tmp = 4
    vOUT, vIN, vANG, vB4, vRK, vM = 16, 32, 48, 56, 72, 88
    vT16b = 90
    vZero = 91
    vCP = 92
    S_OUT, S_IN, S_ANG, S_M, S_AO, S_GO, S_WS = 4, 8, 12, 16, 20, 24, 28
    sFULL = 32
    sK, sM1250, s4F = 34, 40, 41
    sCP = 42
    sMASK = 48
    sRA, sRG, sTAB, sST = 90, 91, 92, 93

    a.label(name)
    a("s_cmp_ge_u32 s2, %d" % NC)
    a("s_cbranch_scc1 L_k1_end")
    a("s_load_dwordx4 s[80:83], s[0:1], 8")
    a("s_load_dwordx2 s[84:85], s[0:1], 32")
    a("s_load_dwordx2 s[86:87], s[0:1], 0")
    a("s_load_dwordx2 s[88:89], s[0:1], 104")
    a("v_lshlrev_b32 %s, 4, v0" % vr(vT16))
    a("v_lshlrev_b32 %s, 3, v0" % vr(vT8))
    a("v_mov_b32 %s, 4" % vr(vFour))
    a("v_mov_b32 %s, 0" % vr(vZero))
    for k in range(1, 4):
        a("v_add_u32 %s, %d, %s" % (vr(tmp + k), 10000 * k, vr(vT16)))
        a("v_add_u32 %s, %d, %s" % (vr(tmp + 4 + k), 5000 * k, vr(vT8)))
    a("v_add_u32 %s, %d, %s" % (vr(vT16b), 4 * STEP, vr(vT16)))
    a("v_lshrrev_b32 %s, 6, v0" % vr(tmp + 8))
    a("s_mul_i32 s94, s2, 40000")
    a("s_mul_i32 s95, s2, 20000")
    a("s_mul_i32 s35, s2, 5000")
    a("v_readfirstlane_b32 s3, %s" % vr(tmp + 8))
    a("s_mov_b32 s%d, %d" % (sK, 6871948))
    a("s_mov_b32 s%d, %d" % (sM1250, -1250))
    a("s_mov_b32 s%d, %d" % (s4F, 4 * F))
    for r in range(1, 7):
        a("s_mov_b32 s%d, %d" % (sCP + r - 1, r * STEP))
    a("s_waitcnt lgkmcnt(0)")
    srd(a, S_OUT, 82, 83, "s94", 40000)
    srd(a, S_IN, 80, 81, "s94", 40000)
    srd(a, S_ANG, 84, 85, "s95", 20000)
    srd(a, S_M, 86, 87, "s35", 5000)
    off16 = [vT16] + [tmp + k for k in range(1, 4)]
    off8 = [vT8] + [tmp + 4 + k for k in range(1, 4)]
    for k in range(4):
        a.vmem("buffer_load_dwordx4 %s, %s, %s, 0 offen" % (vr(vOUT + 4 * k, 4), vr(off16[k]), sr(S_OUT, 4)), "out%d" % k)
    for k in range(4):
        a.vmem("buffer_load_dwordx4 %s, %s, %s, 0 offen" % (vr(vIN + 4 * k, 4), vr(off16[k]), sr(S_IN, 4)), "in%d" % k)
        a.vmem("buffer_load_dwordx2 %s, %s, %s, 0 offen" % (vr(vANG + 2 * k, 2), vr(off8[k]), sr(S_ANG, 4)), "ang%d" % k)
    a.vmem("buffer_load_dwordx2 %s, %s, %s, 0 offen" % (vr(vM, 2), vr(vT8), sr(S_M, 4)), "m")
    a("s_mul_i32 s94, s2, %d" % (1024 * F))
    a("s_mul_i32 s95, s2, %d" % (512 * F))
    a("s_add_u32 s95, s95, 0x%x" % WS_G)
    srd(a, S_AO, 88, 89, "s94", 1024 * F)
    srd(a, S_GO, 88, 89, "s95", 512 * F)
    srd(a, S_WS, 88, 89, None, WS_SIZE)
    a("s_mul_i32 s%d, s2, %d" % (sRA, RSTR))
    a("s_add_u32 s%d, s%d, 0x%x" % (sRA, sRA, WS_RA))
    a("s_mul_i32 s%d, s2, %d" % (sRG, RSTR // 2))
    a("s_add_u32 s%d, s%d, 0x%x" % (sRG, sRG, WS_RG))
    a("s_lshl_b32 s%d, s2, 10" % sTAB)
    a("s_add_u32 s%d, s%d, 0x%x" % (sTAB, sTAB, WS_TAB))
    a("s_lshl_b32 s%d, s2, 3" % sST)
    a("s_add_u32 s%d, s%d, 0x%x" % (sST, sST, WS_ST))
    z = vCP
    for i in range(4):
        a("v_mov_b32 %s, 0" % vr(z + i))
        a("v_mov_b32 %s, -1" % vr(z + 4 + i))
    a.lds("ds_write_b128 %s, %s" % (vr(vT16), vr(z, 4)))
    for r in range(nfill):
        off = A_BASE + r * STEP
        if off <= 65535:
            a.lds("ds_write_b128 %s, %s offset:%d" % (vr(vT16), vr(z + 4, 4), off))
        else:
            a.lds("ds_write_b128 %s, %s offset:%d" % (vr(vT16b), vr(z + 4, 4), off - 4 * STEP))
    a("v_cmp_gt_u32 vcc, %d, v0" % EPB)
    a("s_mov_b64 %s, vcc" % sr(sFULL, 2))
    a.wait_all(vm=False)
    a("s_barrier")
    a("s_mov_b64 exec, %s" % sr(sFULL, 2))
    for k in range(4):
        a.wait_vm("out%d" % k)
        for j in range(4):
            r = 4 * k + j
            a("v_mul_hi_u32_u24 %s, s%d, %s" % (vr(vB4 + r), sK, vr(vOUT + r)))
            a("v_lshlrev_b32 %s, 3, %s" % (vr(vOUT + r), vr(vOUT + r)))
        for j in range(4):
            r = 4 * k + j
            a("v_lshlrev_b32 %s, 2, %s" % (vr(vB4 + r), vr(vB4 + r)))
        for j in range(4):
            r = 4 * k + j
            a.lds("ds_add_rtn_u32 %s, %s, %s" % (vr(vRK + r), vr(vB4 + r), vr(vFour)), "rk%d" % k)
            a("v_mad_i32_i24 %s, %s, s%d, %s" % (vr(vOUT + r), vr(vB4 + r), sM1250, vr(vOUT + r)))
    for k in range(4):
        a.wait_vm("ang%d" % k)
        for j in range(4):
            r = 4 * k + j
            a("v_lshl_or_b32 %s, %s, 13, %s" % (vr(vIN + r), vr(vIN + r), vr(vOUT + r)))
        if a.has_lg("rk%d" % k):
            a.wait_lg("rk%d" % k)
        for j in range(4):
            r = 4 * k + j
            a("v_mad_u32_u24 %s, %s, %d, %s" % (vr(tmp + j), vr(vB4 + r), F, vr(vRK + r)))
            a("v_cmp_gt_u32 %s, s%d, %s" % (sr(sMASK + 2 * r, 2), s4F, vr(vRK + r)))
        for j in range(4):
            a("v_lshrrev_b32 %s, 1, %s" % (vr(tmp + 4 + j), vr(tmp + j)))
        for j in range(4):
            r = 4 * k + j
            a("s_mov_b64 exec, %s" % sr(sMASK + 2 * r, 2))
            a.lds("ds_write_b32 %s, %s offset:%d" % (vr(tmp + j), vr(vIN + r), A_BASE))
            op = "ds_write_b16" if (r % 2 == 0) else "ds_write_b16_d16_hi"
            a.lds("%s %s, %s offset:%d" % (op, vr(tmp + 4 + j), vr(vANG + r // 2), G_BASE))
        a("s_mov_b64 exec, %s" % sr(sFULL, 2))
    a("s_mov_b64 exec, -1")
    a.wait_vm("m")
    t = tmp
    a("s_mov_b32 s94, 0x7fff7fff")
    a("s_mov_b32 s95, 0xffff0000")
    a("v_and_b32 %s, s94, %s" % (vr(t), vr(vM)))
    a("v_and_b32 %s, s94, %s" % (vr(t + 1), vr(vM + 1)))
    a("v_pk_max_u16 %s, %s, %s" % (vr(t), vr(t), vr(t + 1)))
    a("v_and_b32 %s, s94, %s" % (vr(t + 2), vr(vANG)))
    for i in range(1, 8):
        a("v_and_b32 %s, s94, %s" % (vr(t + 3 + (i & 1)), vr(vANG + i)))
        a("s_nop 0")
        a("v_pk_max_u16 %s, %s, %s" % (vr(t + 2), vr(t + 2), vr(t + 3 + (i & 1))))
    a("v_lshrrev_b32 %s, 16, %s" % (vr(t + 1), vr(t)))
    a("v_and_b32 %s, 0xffff, %s" % (vr(t), vr(t)))
    a("v_max_u32 %s, %s, %s" % (vr(t), vr(t), vr(t + 1)))
    a("v_lshlrev_b32 %s, 16, %s" % (vr(t + 3), vr(t + 2)))
    a("v_and_b32 %s, s95, %s" % (vr(t + 2), vr(t + 2)))
    a("v_max_u32 %s, %s, %s" % (vr(t + 2), vr(t + 2), vr(t + 3)))
    a("v_or_b32 %s, %s, %s" % (vr(t), vr(t), vr(t + 2)))
    a("v_lshlrev_b32 %s, 16, %s" % (vr(t + 4), vr(vM)))
    a("v_and_b32 %s, s95, %s" % (vr(t + 5), vr(vM)))
    a("v_lshlrev_b32 %s, 16, %s" % (vr(t + 6), vr(vM + 1)))
    a("v_and_b32 %s, s95, %s" % (vr(t + 7), vr(vM + 1)))
    a("v_add_f32 %s, |%s|, |%s|" % (vr(t + 4), vr(t + 4), vr(t + 5)))
    a("v_add_f32 %s, |%s|, |%s|" % (vr(t + 6), vr(t + 6), vr(t + 7)))
    a("v_add_f32 %s, %s, %s" % (vr(t + 1), vr(t + 4), vr(t + 6)))
    dpp_reduce_pk_sum(a, t, t + 1, t + 2)
    a("s_mov_b32 exec_lo, 0")
    a("s_mov_b32 exec_hi, 0x80000000")
    a("v_and_b32 %s, 0xffff, %s" % (vr(t + 2), vr(t)))
    a("v_lshrrev_b32 %s, 16, %s" % (vr(t + 3), vr(t)))
    a.lds("ds_max_u32 %s, %s offset:2048" % (vr(vZero), vr(t + 2)))
    a.lds("ds_max_u32 %s, %s offset:2052" % (vr(vZero), vr(t + 3)))
    a.lds("ds_add_f32 %s, %s offset:2056" % (vr(vZero), vr(t + 1)))
    a("s_mov_b64 exec, -1")
    a.wait_all(vm=False)
    a("s_barrier")
    a("s_cmp_lg_u32 s3, 0")
    a("s_cbranch_scc1 L_k1_noscan")
    w = tmp
    a("v_lshlrev_b32 %s, 4, v0" % vr(w + 8))
    a("ds_read_b128 %s, %s" % (vr(w, 4), vr(vT16)))
    a("s_waitcnt lgkmcnt(0)")
    for i in range(4):
        a("v_subrev_u32 %s, s%d, %s" % (vr(w + i), s4F, vr(w + i)))
    for i in range(4):
        a("v_max_i32 %s, 0, %s" % (vr(w + i), vr(w + i)))
    a("v_add_u32 %s, %s, %s" % (vr(w + 6), vr(w), vr(w + 1)))
    a("v_add_u32 %s, %s, %s" % (vr(w + 7), vr(w + 6), vr(w + 2)))
    a("v_add_u32 %s, %s, %s" % (vr(w + 8), vr(w + 7), vr(w + 3)))
    a("v_mov_b32 %s, %s" % (vr(w + 9), vr(w + 8)))
    dpp_scan(a, "v_add_u32", w + 9)
    a("v_sub_u32 %s, %s, %s" % (vr(w + 4), vr(w + 9), vr(w + 8)))
    a("v_add_u32 %s, %s, %s" % (vr(w + 5), vr(w + 4), vr(w)))
    a("v_add_u32 %s, %s, %s" % (vr(w + 6), vr(w + 4), vr(w + 6)))
    a("v_add_u32 %s, %s, %s" % (vr(w + 7), vr(w + 4), vr(w + 7)))
    for i in range(4):
        a("v_lshl_or_b32 %s, %s, 16, %s" % (vr(vCP + i), vr(w + 4 + i), vr(w + i)))
    for i in range(4):
        a("v_subrev_u32 %s, s%d, %s" % (vr(w + 4 + i), s4F, vr(w + 4 + i)))
    a("ds_write_b128 %s, %s offset:1024" % (vr(vT16), vr(w + 4, 4)))
    a("buffer_store_dwordx4 %s, %s, %s, s%d offen %s" % (vr(vCP, 4), vr(vT16), sr(S_WS, 4), sTAB, st_flags))
    a("s_nop 1")
    a.label("L_k1_noscan")
    a("s_cmp_lg_u32 s3, 1")
    a("s_cbranch_scc1 L_k1_nostat")
    a("ds_read_b96 %s, %s offset:2048" % (vr(w, 3), vr(vZero)))
    a("s_waitcnt lgkmcnt(0)")
    a("v_lshl_or_b32 %s, %s, 16, %s" % (vr(w + 4), vr(w + 1), vr(w)))
    a("v_mov_b32 %s, %s" % (vr(w + 5), vr(w + 2)))
    a("s_mov_b64 exec, 1")
    a("buffer_store_dwordx2 %s, %s, %s, s%d offen %s" % (vr(w + 4, 2), vr(vZero), sr(S_WS, 4), sST, st_flags))
    a("s_mov_b64 exec, -1")
    a.label("L_k1_nostat")
    jobs = []
    for r in range(nG):
        jobs.append((G_BASE + r * STEP, S_GO, r))
    for r in range(nA):
        jobs.append((A_BASE + r * STEP, S_AO, r))
    for b0 in range(0, len(jobs), 8):
        batch = jobs[b0:b0 + 8]
        for i, (off, s, r) in enumerate(batch):
            if off <= 65535:
                a.lds("ds_read_b128 %s, %s offset:%d" % (vr(vCP + 4 * i, 4), vr(vT16), off), "cp%d" % i)
            else:
                a.lds("ds_read_b128 %s, %s offset:%d" % (vr(vCP + 4 * i, 4), vr(vT16b), off - 4 * STEP), "cp%d" % i)
        for i, (off, s, r) in enumerate(batch):
            a.wait_lg("cp%d" % i)
            so = "0" if r == 0 else "s%d" % (sCP + r - 1)
            if p.k1_voff:
                if r == 0:
                    vo = vT16
                else:
                    vo = tmp + 10 + (i & 1)
                    a("v_add_u32 %s, %d, %s" % (vr(vo), r * STEP, vr(vT16)))
                a.vmem("buffer_store_dwordx4 %s, %s, %s, 0 offen %s" % (vr(vCP + 4 * i, 4), vr(vo), sr(s, 4), st_flags))
            else:
                a.vmem("buffer_store_dwordx4 %s, %s, %s, %s offen %s" % (vr(vCP + 4 * i, 4), vr(vT16), sr(s, 4), so, st_flags))
        a("s_nop 1")
    a.wait_all(vm=False)
    a("s_barrier")
    for r in range(16):
        lab = "L_k1_r%d" % r
        a("s_andn2_b64 exec, %s, %s" % (sr(sFULL, 2), sr(sMASK + 2 * r, 2)))
        a("s_cbranch_scc0 %s" % lab)
        v = tmp + (r & 3)
        a("ds_read_b32 %s, %s offset:1024" % (vr(v), vr(vB4 + r)))
        a("s_waitcnt lgkmcnt(0)")
        a("v_add_u32 %s, %s, %s" % (vr(v), vr(v), vr(vRK + r)))
        a("v_lshrrev_b32 %s, 1, %s" % (vr(v + 4), vr(v)))
        a("buffer_store_dword %s, %s, %s, s%d offen %s" % (vr(vIN + r), vr(v), sr(S_WS, 4), sRA, st_flags))
        op = "buffer_store_short" if (r % 2 == 0) else "buffer_store_short_d16_hi"
        a("%s %s, %s, %s, s%d offen %s" % (op, vr(vANG + r // 2), vr(v + 4), sr(S_WS, 4), sRG, st_flags))
        a.label(lab)
    a.label("L_k1_end")
    a("s_endpgm")
    return name, a.text(), NT, lds_size, 124


INV2PI = 0x3e22f983
INV2PI_LO = None

import struct
def f2u(x):
    return struct.unpack("<I", struct.pack("<f", x))[0]
def u2f(u):
    return struct.unpack("<f", struct.pack("<I", u))[0]
import math
_hi = u2f(INV2PI)
from fractions import Fraction
_INV2PI_EXACT = Fraction(15915494309189533576888376337251436203445964574046, 10**50)
INV2PI_LO = f2u(float(_INV2PI_EXACT - Fraction(_hi)))


def gen_k2(p):
    F = p.F
    NT = p.NT2
    NW = NT // 64
    NQ = 64 * F
    assert NQ % NT == 0
    NK = NQ // NT
    NR = 4 * NK
    QP = F // 4
    D = p.D
    a = Asm()
    name = "gather_scatter__molecular_angular_gemnet__graph_kernel"
    ACC = 0
    PSTR = 5120
    ZR = (6 * PSTR + NT * 16 - 1) // (NT * 16)
    LIST = 45056
    PARAM = LIST + 4096
    lds_size = PARAM + 64
    assert ZR * NT * 16 <= LIST
    REG = NT // 4

    vA = 4
    vANG = vA + NR
    vRA = vANG + NR // 2
    vRG = vRA + 1
    vM = vRG + 1
    if vM % 2:
        vM += 1
    vG = vM + 2 * (NR + 1)
    vR = vG + 12
    vME = vR + 4
    vDIST = vME + 2
    vTAB = vDIST + 1
    vWD = vTAB + 1
    vWU = vWD + 1
    vZero = vWU + 1
    vT = vZero + 1
    if vT % 2:
        vT += 1
    nv_used = vT + 54
    assert nv_used <= 128, nv_used
    vT16, vT8 = 1, 2
    vX = 3

    S_WS, S_M, S_DIST, S_OUT, S_ME = 4, 8, 12, 20, 24
    sBIN, sWAVE, sMODE = 3, 30, 31
    sWSBF, sWRBF, sCEN = 32, 80, 96
    sRV = 100

    M_, S_ = find_div_magic(QP, NQ)

    a.label(name)
    a("s_cmp_ge_u32 s2, %d" % NB)
    a("s_cbranch_scc1 L_k2_end")
    a("s_load_dwordx16 s[8:23], s[0:1], 40")
    a("s_load_dwordx2 s[24:25], s[0:1], 0")
    a("s_load_dwordx2 s[26:27], s[0:1], 24")
    a("s_load_dwordx2 s[28:29], s[0:1], 104")
    a("s_and_b32 s3, s2, 7")
    a("s_lshl_b32 s3, s3, 5")
    a("s_lshr_b32 s30, s2, 3")
    a("s_add_u32 s3, s3, s30")
    a("v_lshlrev_b32 %s, 4, v0" % vr(vT16))
    a("v_lshlrev_b32 %s, 3, v0" % vr(vT8))
    a("v_lshrrev_b32 %s, 6, v0" % vr(vX))
    a("v_mov_b32 %s, 0" % vr(vZero))
    a("s_mov_b32 s100, %d" % M_)
    a("v_readfirstlane_b32 s%d, %s" % (sWAVE, vr(vX)))
    a("s_mov_b32 s101, %d" % (1020 * F))
    for k in range(NK):
        q = vT + 16
        a("v_add_u32 %s, %d, v0" % (vr(q), k * NT))
        a("v_mul_u32_u24 %s, s100, %s" % (vr(q + 1), vr(q)))
        a("v_lshlrev_b32 %s, 4, %s" % (vr(q), vr(q)))
        a("v_lshrrev_b32 %s, %d, %s" % (vr(q + 1), S_, vr(q + 1)))
        a("v_mad_u32_u24 %s, %s, s101, %s" % (vr(vT + k), vr(q + 1), vr(q)))
        a("v_lshrrev_b32 %s, 1, %s" % (vr(vT + 8 + k), vr(vT + k)))
    a("v_lshlrev_b32 %s, 10, v0" % vr(vT + 16))
    a("v_and_b32 %s, 63, v0" % vr(vT + 17))
    a("v_lshlrev_b32 %s, 5, %s" % (vr(vT + 17), vr(vT + 17)))
    a("v_and_b32 %s, 7, v0" % vr(vT + 18))
    a("v_lshlrev_b32 %s, 2, %s" % (vr(vT + 18), vr(vT + 18)))
    a("v_lshlrev_b32 %s, 1, v0" % vr(vT + 19))
    a("s_waitcnt lgkmcnt(0)")
    srd(a, S_WS, 28, 29, None, WS_SIZE)
    a("s_lshl_b32 s28, s3, 2")
    a("s_add_u32 s28, s28, 0x%x" % WS_TAB)
    a("s_mov_b32 s29, 0x%x" % WS_ST)
    a("s_cmp_gt_u32 s%d, 3" % sWAVE)
    a("s_cbranch_scc1 L_k2_notab")
    a("buffer_load_dword %s, %s, %s, s28 offen" % (vr(vTAB), vr(vT + 16), sr(S_WS, 4)))
    a.label("L_k2_notab")
    a("s_cmp_lg_u32 s%d, 4" % sWAVE)
    a("s_cbranch_scc1 L_k2_nost")
    a("buffer_load_dwordx4 %s, %s, %s, s29 offen" % (vr(vT + 24, 4), vr(vT + 17), sr(S_WS, 4)))
    a("buffer_load_dwordx4 %s, %s, %s, s29 offen offset:16" % (vr(vT + 28, 4), vr(vT + 17), sr(S_WS, 4)))
    a.label("L_k2_nost")
    a.vm.append("role")
    a("s_mul_i32 s28, s3, %d" % (4 * F))
    a("s_mul_i32 s29, s3, %d" % (2 * F))
    a("s_add_u32 s29, s29, 0x%x" % WS_G)
    for k in range(NK):
        a.vmem("buffer_load_dwordx4 %s, %s, %s, s28 offen" % (vr(vA + 4 * k, 4), vr(vT + k), sr(S_WS, 4)), "A%d" % k)
    for k in range(NK):
        a.vmem("buffer_load_dwordx2 %s, %s, %s, s29 offen" % (vr(vANG + 2 * k, 2), vr(vT + 8 + k), sr(S_WS, 4)), "ANG%d" % k)
    a("s_load_dwordx16 s[32:47], s[14:15], 0")
    a("s_load_dwordx16 s[48:63], s[14:15], 64")
    a("s_load_dwordx16 s[64:79], s[14:15], 128")
    a("s_load_dwordx16 s[80:95], s[12:13], 0")
    a("s_load_dwordx4 s[96:99], s[8:9], 0")
    a.vmem("global_load_dword %s, %s, s[16:17]" % (vr(vWD), vr(vT + 18)), "wd")
    a.vmem("global_load_dword %s, %s, s[18:19]" % (vr(vWU), vr(vT + 18)), "wu")
    srd(a, S_M, 24, 25, None, E, stride=8)
    a("s_mul_i32 s28, s3, %d" % (EPB * 2))
    srd(a, S_DIST, 26, 27, "s28", EPB * 2)
    a("s_mul_i32 s28, s3, %d" % (EPB * 8))
    srd(a, S_OUT, 20, 21, "s28", EPB * 8)
    srd(a, S_ME, 24, 25, "s28", EPB * 8)
    a.vmem("buffer_load_ushort %s, %s, %s, 0 offen" % (vr(vDIST), vr(vT + 19), sr(S_DIST, 4)), "dist")
    a.vmem("buffer_load_dwordx2 %s, %s, %s, 0 offen" % (vr(vME, 2), vr(vT8), sr(S_ME, 4)), "me")
    for i in range(4):
        a("v_mov_b32 %s, 0" % vr(vT + 20 + i))
    for r in range(ZR):
        a("ds_write_b128 %s, %s offset:%d" % (vr(vT16), vr(vT + 20, 4), r * NT * 16))
    a("s_cmp_gt_u32 s%d, 3" % sWAVE)
    a("s_cbranch_scc1 L_k2_nolist")
    n_after_role = len(a.vm) - 1
    a("s_waitcnt vmcnt(%d)" % n_after_role)
    t = vT + 24
    a("v_and_b32 %s, 0xffff, %s" % (vr(t), vr(vTAB)))
    a("v_lshrrev_b32 %s, 16, %s" % (vr(t + 1), vr(vTAB)))
    a("v_lshrrev_b32 %s, 2, %s" % (vr(t), vr(t)))
    a("s_mov_b32 s28, %d" % RSTR)
    a("v_mad_u32_u24 %s, v0, s28, %s" % (vr(t + 1), vr(t + 1)))
    a("v_mov_b32 %s, %s" % (vr(t + 2), vr(t)))
    dpp_scan(a, "v_add_u32", t + 2)
    a("s_nop 0")
    a("v_readlane_b32 s28, %s, 63" % vr(t + 2))
    a("v_sub_u32 %s, %s, %s" % (vr(t + 3), vr(t + 2), vr(t)))
    a("s_lshl_b32 s29, s%d, 2" % sWAVE)
    a("v_mov_b32 %s, s29" % vr(t + 4))
    a("v_mov_b32 %s, s28" % vr(t + 5))
    a("ds_write_b32 %s, %s offset:%d" % (vr(t + 4), vr(t + 5), PARAM + 16))
    a("s_cmp_gt_u32 s28, %d" % REG)
    a("s_cbranch_scc1 L_k2_nolist")
    a("s_mul_i32 s29, s%d, %d" % (sWAVE, REG * 4))
    a("v_lshlrev_b32 %s, 2, %s" % (vr(t + 3), vr(t + 3)))
    a("v_add_u32 %s, s29, %s" % (vr(t + 3), vr(t + 3)))
    a.label("L_k2_listloop")
    a("v_cmp_lt_u32 vcc, 0, %s" % vr(t))
    a("s_and_b64 exec, exec, vcc")
    a("s_cbranch_scc0 L_k2_listdone")
    a("ds_write_b32 %s, %s offset:%d" % (vr(t + 3), vr(t + 1), LIST))
    a("v_add_u32 %s, -1, %s" % (vr(t), vr(t)))
    a("v_add_u32 %s, 4, %s" % (vr(t + 3), vr(t + 3)))
    a("v_add_u32 %s, 4, %s" % (vr(t + 1), vr(t + 1)))
    a("s_branch L_k2_listloop")
    a.label("L_k2_listdone")
    a("s_mov_b64 exec, -1")
    a.label("L_k2_nolist")
    a("s_cmp_lg_u32 s%d, 4" % sWAVE)
    a("s_cbranch_scc1 L_k2_nostat")
    a("s_waitcnt vmcnt(%d)" % n_after_role)
    a("v_pk_max_u16 %s, %s, %s" % (vr(t), vr(t), vr(t + 2)))
    a("v_pk_max_u16 %s, %s, %s" % (vr(t + 4), vr(t + 4), vr(t + 6)))
    a("v_add_f32 %s, %s, %s" % (vr(t + 1), vr(t + 1), vr(t + 3)))
    a("v_add_f32 %s, %s, %s" % (vr(t + 5), vr(t + 5), vr(t + 7)))
    a("v_pk_max_u16 %s, %s, %s" % (vr(t), vr(t), vr(t + 4)))
    a("v_add_f32 %s, %s, %s" % (vr(t + 1), vr(t + 1), vr(t + 5)))
    dpp_reduce_pk_sum(a, t, t + 1, t + 2)
    a("v_and_b32 %s, 0xffff, %s" % (vr(t + 2), vr(t)))
    a("v_lshrrev_b32 %s, 16, %s" % (vr(t + 3), vr(t)))
    a("v_lshrrev_b32 %s, 7, %s" % (vr(t + 4), vr(t + 2)))
    a("v_lshlrev_b32 %s, 16, %s" % (vr(t + 5), vr(t + 2)))
    a("v_mul_f32 %s, 0x%x, %s" % (vr(t + 5), f2u(640000.0 / 128.0), vr(t + 5)))
    a("v_cmp_le_f32 vcc, %s, %s" % (vr(t + 5), vr(t + 1)))
    a("v_cmp_lt_u32 s[28:29], 16, %s" % vr(t + 4))
    a("s_and_b64 vcc, vcc, s[28:29]")
    a("s_mov_b32 s100, 255")
    a("v_cmp_gt_u32 s[28:29], s100, %s" % vr(t + 4))
    a("s_and_b64 vcc, vcc, s[28:29]")
    a("s_movk_i32 s100, 0x4281")
    a("v_cmp_gt_u32 s[28:29], s100, %s" % vr(t + 3))
    a("s_and_b64 vcc, vcc, s[28:29]")
    a("v_sub_u32 %s, 270, %s" % (vr(t + 8), vr(t + 4)))
    a("v_lshlrev_b32 %s, 23, %s" % (vr(t + 8), vr(t + 8)))
    a("v_subrev_u32 %s, 16, %s" % (vr(t + 9), vr(t + 4)))
    a("v_lshlrev_b32 %s, 23, %s" % (vr(t + 9), vr(t + 9)))
    a("v_cndmask_b32 %s, 0, 1, vcc" % vr(t + 10))
    a("v_mov_b32 %s, 0" % vr(t + 11))
    a("s_mov_b32 exec_lo, 0")
    a("s_mov_b32 exec_hi, 0x80000000")
    a("ds_write_b128 %s, %s offset:%d" % (vr(vZero), vr(t + 8, 4), PARAM))
    a("s_mov_b64 exec, -1")
    a.label("L_k2_nostat")

    idx_t = [vT + 16 + i for i in range(4)]
    gcount = [0]

    def gather(r):
        src = vA + r if r < NR else vRA
        it = idx_t[gcount[0] & 3]
        gcount[0] += 1
        a("v_lshrrev_b32 %s, 13, %s" % (vr(it), vr(src)))
        a.vmem("buffer_load_dwordx2 %s, %s, %s, 0 idxen" % (vr(vM + 2 * r, 2), vr(it), sr(S_M, 4)), "G%d" % r)

    issued = 0
    waitedA = set()

    def gather_next():
        nonlocal issued
        r = issued
        if r < NR:
            k = r // 4
            if k not in waitedA:
                a.wait_vm("A%d" % k)
                waitedA.add(k)
        else:
            a.wait_vm("RA")
        gather(r)
        issued += 1

    for _ in range(p.PRE):
        gather_next()
    a.wait_all(vm=False)
    a("s_barrier")
    t = vT + 24
    a("v_lshrrev_b32 %s, %d, v0" % (vr(t + 9), 8) if REG == 256 else "s_nop 0")
    assert REG == 256
    a("v_lshlrev_b32 %s, 2, %s" % (vr(t + 9), vr(t + 9)))
    a("v_lshlrev_b32 %s, 2, v0" % vr(t + 10))
    a("ds_read_b128 %s, %s offset:%d" % (vr(t, 4), vr(vZero), PARAM))
    a("ds_read_b128 %s, %s offset:%d" % (vr(t + 4, 4), vr(vZero), PARAM + 16))
    a("ds_read_b32 %s, %s offset:%d" % (vr(t + 8), vr(t + 9), PARAM + 16))
    a("ds_read_b32 %s, %s offset:%d" % (vr(t + 11), vr(t + 10), LIST))
    a("v_and_b32 %s, %d, v0" % (vr(t + 12), REG - 1))
    a("s_waitcnt lgkmcnt(0)")
    a("v_cmp_lt_u32 %s, %s, %s" % (sr(sRV, 2), vr(t + 12), vr(t + 8)))
    a("v_max3_u32 %s, %s, %s, %s" % (vr(t + 4), vr(t + 4), vr(t + 5), vr(t + 6)))
    a("v_max_u32 %s, %s, %s" % (vr(t + 4), vr(t + 4), vr(t + 7)))
    a("v_bfrev_b32 %s, 1" % vr(t + 13))
    a("v_cndmask_b32 %s, %s, %s, %s" % (vr(t + 11), vr(t + 13), vr(t + 11), sr(sRV, 2)))
    a("v_cmp_ge_u32 vcc, %d, %s" % (REG, vr(t + 4)))
    a("v_lshrrev_b32 %s, 1, %s" % (vr(t + 12), vr(t + 11)))
    a("s_mov_b32 s28, 0x%x" % WS_RA)
    a("s_mov_b32 s29, 0x%x" % WS_RG)
    a("v_cndmask_b32 %s, 0, %s, vcc" % (vr(t + 2), vr(t + 2)))
    a.vmem("buffer_load_dword %s, %s, %s, s28 offen" % (vr(vRA), vr(t + 11), sr(S_WS, 4)), "RA")
    a.vmem("buffer_load_ushort %s, %s, %s, s29 offen" % (vr(vRG), vr(t + 12), sr(S_WS, 4)), "RG")
    a("v_readfirstlane_b32 s%d, %s" % (sMODE, vr(t + 2)))
    vSC, vINV = vT + 50, vT + 51
    a("v_mov_b32 %s, %s" % (vr(vSC), vr(t)))
    a("v_mov_b32 %s, %s" % (vr(vINV), vr(t + 1)))
    if p.force_slow:
        a("s_mov_b32 s%d, 0" % sMODE)
    while issued < min(D, NR):
        gather_next()

    a.wait_vm("me")
    a("s_cmp_gt_u32 s%d, 9" % sWAVE)
    a("s_cbranch_scc1 L_k2_nopro")
    rb = vT + 24
    u = vT + 32
    w2 = vT + 40
    a("v_lshlrev_b32 %s, 16, %s" % (vr(vDIST), vr(vDIST)))

    def rnd_pair(x0, x1, tp):
        a("v_cvt_pk_bf16_f32 %s, %s, %s" % (vr(tp), vr(x0), vr(x1)))
        a("s_nop 0")
        a("v_lshlrev_b32 %s, 16, %s" % (vr(x0), vr(tp)))
        a("v_and_b32 %s, 0xffff0000, %s" % (vr(x1), vr(tp)))

    for i in range(4):
        a("s_lshl_b32 s28, s%d, 16" % (sCEN + i))
        a("s_and_b32 s29, s%d, 0xffff0000" % (sCEN + i))
        a("v_subrev_f32 %s, s28, %s" % (vr(rb + 2 * i), vr(vDIST)))
        a("v_subrev_f32 %s, s29, %s" % (vr(rb + 2 * i + 1), vr(vDIST)))
    for i in range(4):
        rnd_pair(rb + 2 * i, rb + 2 * i + 1, u + i)
    for i in range(8):
        a("v_mul_f32 %s, %s, %s" % (vr(rb + i), vr(rb + i), vr(rb + i)))
    for i in range(4):
        rnd_pair(rb + 2 * i, rb + 2 * i + 1, u + i)
    for i in range(8):
        a("v_mul_f32 %s, 0x%x, %s" % (vr(rb + i), f2u(-10.0), vr(rb + i)))
    for i in range(4):
        rnd_pair(rb + 2 * i, rb + 2 * i + 1, u + i)
    for i in range(8):
        a("v_mul_f32 %s, 0x%x, %s" % (vr(rb + i), f2u(math.log2(math.e)), vr(rb + i)))
    for i in range(8):
        a("v_exp_f32 %s, %s" % (vr(rb + i), vr(rb + i)))
    a("s_nop 0")
    for i in range(4):
        rnd_pair(rb + 2 * i, rb + 2 * i + 1, u + i)
    def bc(r):
        return (r & 1)
    tp = [28, 28]
    for r in range(8):
        for l in range(3):
            row = 3 * r + l
            for h in range(2):
                sw = sWSBF + 2 * row + h
                a("s_lshl_b32 s28, s%d, 16" % sw)
                a("s_and_b32 s29, s%d, 0xffff0000" % sw)
                dst = vG + 4 * l + 2 * h
                src = rb + (r & ~1)
                o = r & 1
                if r == 0:
                    a("v_pk_mul_f32 %s, %s, s[28:29] op_sel:[%d,0] op_sel_hi:[%d,1]" % (vr(dst, 2), vr(src, 2), o, o))
                else:
                    a("v_pk_fma_f32 %s, %s, s[28:29], %s op_sel:[%d,0,0] op_sel_hi:[%d,1,1]" % (vr(dst, 2), vr(src, 2), vr(dst, 2), o, o))
        for h in range(2):
            sw = sWRBF + 2 * r + h
            a("s_lshl_b32 s28, s%d, 16" % sw)
            a("s_and_b32 s29, s%d, 0xffff0000" % sw)
            dst = vR + 2 * h
            src = rb + (r & ~1)
            o = r & 1
            if r == 0:
                a("v_pk_mul_f32 %s, %s, s[28:29] op_sel:[%d,0] op_sel_hi:[%d,1]" % (vr(dst, 2), vr(src, 2), o, o))
            else:
                a("v_pk_fma_f32 %s, %s, s[28:29], %s op_sel:[%d,0,0] op_sel_hi:[%d,1,1]" % (vr(dst, 2), vr(src, 2), vr(dst, 2), o, o))
    a.label("L_k2_nopro")
    sMAG, sNEG, sSC, sNSC, sINV, sI2P, s3P, sHM = 32, 34, 36, 38, 40, 42, 44, 46
    sWDf, sWUf = 48, 64
    a("s_mov_b32 s%d, 0x4b400000" % sMAG)
    a("s_mov_b32 s%d, 0x4b400000" % (sMAG + 1))
    a("s_mov_b32 s%d, 0xb4c00000" % sNEG)
    a("s_mov_b32 s%d, 0xb4bfffff" % (sNEG + 1))
    a("v_readfirstlane_b32 s%d, %s" % (sSC, vr(vSC)))
    a("v_readfirstlane_b32 s%d, %s" % (sINV, vr(vINV)))
    a("s_mov_b32 s%d, 0x%x" % (sI2P, INV2PI))
    a("s_mov_b32 s%d, 0x%x" % (sI2P + 1, INV2PI))
    a("s_mov_b32 s%d, 0x40400000" % s3P)
    a("s_mov_b32 s%d, 0x40400000" % (s3P + 1))
    a("s_mov_b32 s%d, 0xffff0000" % sHM)
    a("s_mov_b32 s%d, s%d" % (sSC + 1, sSC))
    a("s_xor_b32 s%d, s%d, 0x80000000" % (sNSC, sSC))
    a("s_xor_b32 s%d, s%d, 0x80000000" % (sNSC + 1, sSC))
    a("s_mov_b32 s%d, s%d" % (sINV + 1, sINV))
    a.wait_vm("wu") if a.has_vm("wu") else None
    for i in range(8):
        a("v_readlane_b32 s%d, %s, %d" % (80 + i, vr(vWD), i))
        a("v_readlane_b32 s%d, %s, %d" % (88 + i, vr(vWU), i))
    for i in range(8):
        a("s_lshl_b32 s%d, s%d, 16" % (sWDf + 2 * i, 80 + i))
        a("s_and_b32 s%d, s%d, s%d" % (sWDf + 2 * i + 1, 80 + i, sHM))
        a("s_lshl_b32 s%d, s%d, 16" % (sWUf + 2 * i, 88 + i))
        a("s_and_b32 s%d, s%d, s%d" % (sWUf + 2 * i + 1, 88 + i, sHM))
    a("s_cmp_eq_u32 s%d, 0" % sMODE)
    a("s_cbranch_scc1 L_k2_slow")
    saved_vm = list(a.vm)

    c0 = vT + 20
    AA, T3, RV, C1, C3, C1S, C2S, C3S = [c0 + 2 * i for i in range(8)]
    PK = vT + 36
    MF = vT + 38
    PR = [vT + 42, vT + 54]
    PRD = vT + 42
    AD = vT + 37

    def angle_math(src_dw, single=False):
        if single:
            a("v_lshlrev_b32 %s, 16, %s" % (vr(AA), vr(src_dw)))
            a("v_lshlrev_b32 %s, 16, %s" % (vr(AA + 1), vr(src_dw)))
        else:
            a("v_lshlrev_b32 %s, 16, %s" % (vr(AA), vr(src_dw)))
            a("v_and_b32 %s, s%d, %s" % (vr(AA + 1), sHM, vr(src_dw)))
        a("v_pk_mul_f32 %s, %s, %s" % (vr(T3, 2), vr(AA, 2), sr(s3P, 2)))
        a("v_pk_mul_f32 %s, %s, %s" % (vr(RV, 2), vr(AA, 2), sr(sI2P, 2)))
        a("v_cvt_pk_bf16_f32 %s, %s, %s" % (vr(PK), vr(T3), vr(T3 + 1)))
        a("v_cos_f32 %s, %s" % (vr(C1), vr(RV)))
        a("v_cos_f32 %s, %s" % (vr(C1 + 1), vr(RV + 1)))
        a("v_lshlrev_b32 %s, 16, %s" % (vr(T3), vr(PK)))
        a("v_and_b32 %s, s%d, %s" % (vr(T3 + 1), sHM, vr(PK)))
        a("v_pk_mul_f32 %s, %s, %s" % (vr(C1S, 2), vr(C1, 2), sr(sSC, 2)))
        a("v_pk_mul_f32 %s, %s, %s" % (vr(RV, 2), vr(T3, 2), sr(sI2P, 2)))
        a("v_pk_add_f32 %s, %s, %s" % (vr(AA, 2), vr(C1, 2), vr(C1, 2)))
        a("v_cos_f32 %s, %s" % (vr(C3), vr(RV)))
        a("v_cos_f32 %s, %s" % (vr(C3 + 1), vr(RV + 1)))
        a("v_pk_fma_f32 %s, %s, %s, %s" % (vr(C2S, 2), vr(C1S, 2), vr(AA, 2), sr(sNSC, 2)))
        a("v_pk_mul_f32 %s, %s, %s" % (vr(C3S, 2), vr(C3, 2), sr(sSC, 2)))

    def process(r, half):
        src = vA + r if r < NR else vRA
        m = vM + 2 * r
        a("v_and_b32 %s, 0x1ff8, %s" % (vr(AD), vr(src)))
        a.wait_vm("G%d" % r)
        a("v_lshlrev_b32 %s, 16, %s" % (vr(MF), vr(m)))
        a("v_and_b32 %s, s%d, %s" % (vr(MF + 1), sHM, vr(m)))
        a("v_lshlrev_b32 %s, 16, %s" % (vr(MF + 2), vr(m + 1)))
        a("v_and_b32 %s, s%d, %s" % (vr(MF + 3), sHM, vr(m + 1)))
        cs = [C1S, C2S, C3S]
        for l in range(3):
            for h in range(2):
                d = PRD + 4 * l + 2 * h
                a("v_pk_fma_f32 %s, %s, %s, %s op_sel:[0,%d,0] op_sel_hi:[1,%d,1]" % (vr(d, 2), vr(MF + 2 * h, 2), vr(cs[l], 2), sr(sMAG, 2), half, half))
        for i in range(6):
            d = PRD + 2 * i
            a("v_lshl_add_u64 %s, %s, 0, %s" % (vr(d, 2), vr(d, 2), sr(sNEG, 2)))
        if r < NR:
            a("v_cmpx_ne_u32 vcc, -1, %s" % vr(src))
        else:
            a("s_mov_b64 exec, %s" % sr(sRV, 2))
        for i in range(6):
            a("ds_add_u64 %s, %s offset:%d" % (vr(AD), vr(PRD + 2 * i, 2), ACC + i * PSTR))
        a("s_mov_b64 exec, -1")

    for r in range(NR + 1):
        if r < NR:
            if r % 2 == 0:
                if r % 4 == 0:
                    a.wait_vm("ANG%d" % (r // 4)) if a.has_vm("ANG%d" % (r // 4)) else None
                angle_math(vANG + r // 2)
        else:
            a.wait_vm("RG") if a.has_vm("RG") else None
            angle_math(vRG, single=True)
        if issued <= NR:
            gather_next()
        process(r, (r % 2) if r < NR else 0)
    a("s_waitcnt lgkmcnt(0)")
    a("s_barrier")
    a("s_cmp_gt_u32 s%d, 9" % sWAVE)
    a("s_cbranch_scc1 L_k2_end")
    SS = vT + 20
    for i in range(6):
        a("ds_read_b64 %s, %s offset:%d" % (vr(SS + 2 * i, 2), vr(vT8), ACC + i * PSTR))
    a("s_waitcnt lgkmcnt(0)")
    for i in range(6):
        a("v_ashrrev_i32 %s, 31, %s" % (vr(vT + 32 + i), vr(SS + 2 * i)))
    for i in range(6):
        a("v_sub_u32 %s, %s, %s" % (vr(SS + 2 * i + 1), vr(SS + 2 * i + 1), vr(vT + 32 + i)))
    for i in range(12):
        a("v_cvt_f32_i32 %s, %s" % (vr(SS + i), vr(SS + i)))
    for i in range(6):
        a("v_pk_mul_f32 %s, %s, %s" % (vr(SS + 2 * i, 2), vr(SS + 2 * i, 2), sr(sINV, 2)))
    a.label("L_k2_epi")
    SP = vT + 32
    for l in range(3):
        for jh in range(2):
            d = SP + 4 * l + 2 * jh
            for i in range(4):
                src = SS + 4 * l + (i & ~1)
                o = i & 1
                w = sWDf + 4 * i + 2 * jh
                if i == 0:
                    a("v_pk_mul_f32 %s, %s, %s op_sel:[%d,0] op_sel_hi:[%d,1]" % (vr(d, 2), vr(src, 2), sr(w, 2), o, o))
                else:
                    a("v_pk_fma_f32 %s, %s, %s, %s op_sel:[%d,0,0] op_sel_hi:[%d,1,1]" % (vr(d, 2), vr(src, 2), sr(w, 2), vr(d, 2), o, o))
    AG = vT + 44
    for jh in range(2):
        d = AG + 2 * jh
        for l in range(3):
            if l == 0:
                a("v_pk_mul_f32 %s, %s, %s" % (vr(d, 2), vr(SP + 2 * jh, 2), vr(vG + 2 * jh, 2)))
            else:
                a("v_pk_fma_f32 %s, %s, %s, %s" % (vr(d, 2), vr(SP + 4 * l + 2 * jh, 2), vr(vG + 4 * l + 2 * jh, 2), vr(d, 2)))
    UP = vT + 48
    for kh in range(2):
        d = UP + 2 * kh
        for j in range(4):
            src = AG + (j & ~1)
            o = j & 1
            w = sWUf + 4 * j + 2 * kh
            if j == 0:
                a("v_pk_mul_f32 %s, %s, %s op_sel:[%d,0] op_sel_hi:[%d,1]" % (vr(d, 2), vr(src, 2), sr(w, 2), o, o))
            else:
                a("v_pk_fma_f32 %s, %s, %s, %s op_sel:[%d,0,0] op_sel_hi:[%d,1,1]" % (vr(d, 2), vr(src, 2), sr(w, 2), vr(d, 2), o, o))
    MEF = vT + 20
    a("v_lshlrev_b32 %s, 16, %s" % (vr(MEF), vr(vME)))
    a("v_and_b32 %s, s%d, %s" % (vr(MEF + 1), sHM, vr(vME)))
    a("v_lshlrev_b32 %s, 16, %s" % (vr(MEF + 2), vr(vME + 1)))
    a("v_and_b32 %s, s%d, %s" % (vr(MEF + 3), sHM, vr(vME + 1)))
    for kh in range(2):
        a("v_pk_fma_f32 %s, %s, %s, %s" % (vr(UP + 2 * kh, 2), vr(UP + 2 * kh, 2), vr(vR + 2 * kh, 2), vr(MEF + 2 * kh, 2)))
    a("v_cvt_pk_bf16_f32 %s, %s, %s" % (vr(AG), vr(UP), vr(UP + 1)))
    a("v_cvt_pk_bf16_f32 %s, %s, %s" % (vr(AG + 1), vr(UP + 2), vr(UP + 3)))
    a("buffer_store_dwordx2 %s, %s, %s, 0 offen" % (vr(AG, 2), vr(vT8), sr(S_OUT, 4)))
    a("s_endpgm")

    a.label("L_k2_slow")
    a("s_waitcnt vmcnt(0)")
    sC_HI, sC_LO = 80, 81
    a("s_mov_b32 s%d, 0x%x" % (sC_HI, INV2PI))
    a("s_mov_b32 s%d, 0x%x" % (sC_LO, INV2PI_LO))
    X = vT + 20
    H = vT + 24
    L_ = vT + 28
    Cc = vT + 32
    SM = vT + 36
    SAD = vT + 16
    SI = vT + 17

    def slow_rec(vsrcA, ang_expr_lo, vang, maskmode):
        a("v_lshrrev_b32 %s, 13, %s" % (vr(SI), vr(vsrcA)))
        a("buffer_load_dwordx2 %s, %s, %s, 0 idxen" % (vr(SM, 2), vr(SI), sr(S_M, 4)))
        a("v_and_b32 %s, 0x1ff8, %s" % (vr(SAD), vr(vsrcA)))
        if ang_expr_lo:
            a("v_lshlrev_b32 %s, 16, %s" % (vr(X), vr(vang)))
        else:
            a("v_and_b32 %s, s%d, %s" % (vr(X), sHM, vr(vang)))
        a("v_add_f32 %s, %s, %s" % (vr(X + 1), vr(X), vr(X)))
        a("v_mul_f32 %s, s%d, %s" % (vr(X + 2), s3P, vr(X)))
        a("v_cvt_pk_bf16_f32 %s, %s, %s" % (vr(X + 2), vr(X + 2), vr(X + 2)))
        a("s_nop 0")
        a("v_lshlrev_b32 %s, 16, %s" % (vr(X + 2), vr(X + 2)))
        for i in range(3):
            a("v_mul_f32 %s, s%d, %s" % (vr(H + i), sC_HI, vr(X + i)))
        for i in range(3):
            a("v_fma_f32 %s, %s, s%d, -%s" % (vr(L_ + i), vr(X + i), sC_HI, vr(H + i)))
        for i in range(3):
            a("v_fma_f32 %s, %s, s%d, %s" % (vr(L_ + i), vr(X + i), sC_LO, vr(L_ + i)))
        for i in range(3):
            a("v_fract_f32 %s, %s" % (vr(H + i), vr(H + i)))
        for i in range(3):
            a("v_add_f32 %s, %s, %s" % (vr(H + i), vr(H + i), vr(L_ + i)))
        for i in range(3):
            a("v_cos_f32 %s, %s" % (vr(Cc + i), vr(H + i)))
        a("s_waitcnt vmcnt(0)")
        a("v_lshlrev_b32 %s, 16, %s" % (vr(MF), vr(SM)))
        a("v_and_b32 %s, s%d, %s" % (vr(MF + 1), sHM, vr(SM)))
        a("v_lshlrev_b32 %s, 16, %s" % (vr(MF + 2), vr(SM + 1)))
        a("v_and_b32 %s, s%d, %s" % (vr(MF + 3), sHM, vr(SM + 1)))
        for l in range(3):
            for h in range(2):
                d = PRD + 4 * l + 2 * h
                src = Cc + (l & ~1)
                o = l & 1
                a("v_pk_mul_f32 %s, %s, %s op_sel:[0,%d] op_sel_hi:[1,%d]" % (vr(d, 2), vr(MF + 2 * h, 2), vr(src, 2), o, o))
        if maskmode == "A":
            a("v_cmpx_ne_u32 vcc, -1, %s" % vr(vsrcA))
        for l in range(3):
            for i in range(4):
                a("ds_add_f32 %s, %s offset:%d" % (vr(SAD), vr(PRD + 4 * l + i), ACC + (2 * l + i // 2) * PSTR + 4 * (i & 1)))
        if maskmode == "A":
            a("s_mov_b64 exec, -1")

    for r in range(NR):
        slow_rec(vA + r, r % 2 == 0, vANG + r // 2, "A")
    sCc, sEnt, sRem, sBase, sI = 82, 83, 84, 85, 86
    a("s_mov_b32 s%d, s%d" % (sCc, sWAVE))
    a("v_and_b32 %s, 63, v0" % vr(vT + 18))
    a("v_lshlrev_b32 %s, 2, %s" % (vr(vT + 18), vr(vT + 18)))
    a.label("L_k2_sp_piece")
    a("s_lshl_b32 s87, s%d, 10" % sCc)
    a("s_lshl_b32 s88, s3, 2")
    a("s_add_u32 s87, s87, s88")
    a("s_add_u32 s87, s87, 0x%x" % WS_TAB)
    a("v_mov_b32 %s, s87" % vr(vT + 19))
    a("buffer_load_dword %s, %s, %s, 0 offen" % (vr(vT + 19), vr(vT + 19), sr(S_WS, 4)))
    a("s_waitcnt vmcnt(0)")
    a("v_readfirstlane_b32 s%d, %s" % (sEnt, vr(vT + 19)))
    a("s_and_b32 s%d, s%d, 0xffff" % (sRem, sEnt))
    a("s_lshr_b32 s%d, s%d, 16" % (sBase, sEnt))
    a("s_mul_i32 s87, s%d, %d" % (sCc, RSTR))
    a("s_add_u32 s%d, s%d, s87" % (sBase, sBase))
    a("s_mov_b32 s%d, 0" % sI)
    a.label("L_k2_sp_batch")
    a("s_cmp_ge_u32 s%d, s%d" % (sI, sRem))
    a("s_cbranch_scc1 L_k2_sp_next")
    a("v_add_u32 %s, s%d, %s" % (vr(vT + 19), sI, vr(vT + 18)))
    a("v_cmp_gt_u32 vcc, s%d, %s" % (sRem, vr(vT + 19)))
    a("v_add_u32 %s, s%d, %s" % (vr(vT + 19), sBase, vr(vT + 19)))
    a("s_mov_b64 exec, vcc")
    a("v_lshrrev_b32 %s, 1, %s" % (vr(vT + 15), vr(vT + 19)))
    a("s_mov_b32 s87, 0x%x" % WS_RA)
    a("s_mov_b32 s88, 0x%x" % WS_RG)
    a("buffer_load_dword %s, %s, %s, s87 offen" % (vr(vRA), vr(vT + 19), sr(S_WS, 4)))
    a("buffer_load_ushort %s, %s, %s, s88 offen" % (vr(vRG), vr(vT + 15), sr(S_WS, 4)))
    a("s_waitcnt vmcnt(0)")
    slow_rec(vRA, True, vRG, "none")
    a("s_mov_b64 exec, -1")
    a("s_add_u32 s%d, s%d, 256" % (sI, sI))
    a("s_branch L_k2_sp_batch")
    a.label("L_k2_sp_next")
    a("s_add_u32 s%d, s%d, %d" % (sCc, sCc, NW))
    a("s_cmp_lt_u32 s%d, %d" % (sCc, NC))
    a("s_cbranch_scc1 L_k2_sp_piece")
    a("s_waitcnt lgkmcnt(0)")
    a("s_barrier")
    a("s_cmp_gt_u32 s%d, 9" % sWAVE)
    a("s_cbranch_scc1 L_k2_end")
    for i in range(6):
        a("ds_read_b64 %s, %s offset:%d" % (vr(SS + 2 * i, 2), vr(vT8), ACC + i * PSTR))
    a("s_waitcnt lgkmcnt(0)")
    a("s_branch L_k2_epi")
    a.label("L_k2_end")
    a("s_endpgm")
    return name, a.text(), NT, lds_size, nv_used


def kernel_desc(name, nv, ns=102):
    acc = (nv + 3) // 4 * 4
    return """.amdhsa_kernel %s
  .amdhsa_next_free_vgpr %d
  .amdhsa_next_free_sgpr %d
  .amdhsa_accum_offset %d
  .amdhsa_group_segment_fixed_size 0
  .amdhsa_kernarg_size 112
  .amdhsa_user_sgpr_count 2
  .amdhsa_user_sgpr_kernarg_segment_ptr 1
  .amdhsa_system_sgpr_workgroup_id_x 1
  .amdhsa_float_denorm_mode_32 3
.end_amdhsa_kernel
""" % (name, nv, ns, acc)


def main():
    ap = argparse.ArgumentParser()
    ap.add_argument("-o", default="gather_scatter__molecular_angular_gemnet__graph.s")
    ap.add_argument("--F", type=int, default=48)
    ap.add_argument("--NT2", type=int, default=1024)
    ap.add_argument("--D", type=int, default=4)
    ap.add_argument("--PRE", type=int, default=1)
    ap.add_argument("--st", default="")
    ap.add_argument("--force_slow", action="store_true")
    ap.add_argument("--k1_lds_min", type=int, default=0)
    ap.add_argument("--k1_voff", type=int, default=1)
    p = ap.parse_args()
    p.st_flags = p.st.replace("+", " ")
    n1, t1, nt1, lds1, nv1 = gen_k1(p)
    n2, t2, nt2, lds2, nv2 = gen_k2(p)
    out = []
    out.append("; @launch kernel=%s grid=(256,1,1) block=(%d,1,1) lds=%d" % (n1, nt1, lds1))
    out.append("; @launch kernel=%s grid=(256,1,1) block=(%d,1,1) lds=%d" % (n2, nt2, lds2))
    out.append('.amdgcn_target "amdgcn-amd-amdhsa--gfx950"')
    out.append(".text")
    for n, t in ((n1, t1), (n2, t2)):
        out.append(".globl %s" % n)
        out.append(".p2align 8")
        out.append(".type %s,@function" % n)
        out.append(t)
    out.append('.section .rodata,"a"')
    out.append(".p2align 6")
    out.append(kernel_desc(n1, nv1))
    out.append(".p2align 6")
    out.append(kernel_desc(n2, nv2))
    open(p.o, "w").write("\n".join(out))


if __name__ == "__main__":
    main()
```

```python
import sys, argparse

E = 160000
T = 2560000
NB = 256
EPB = 625
NC = 256
CH = 10000

WS_A = 0
WS_G = 16 << 20
WS_RA = 32 << 20
WS_RG = 48 << 20
WS_TAB = 56 << 20
WS_ST = 57 << 20
WS_SIZE = 64 << 20
RSTR = 40960


class Asm:
    def __init__(self):
        self.lines = []
        self.vm = []
        self.lg = []
        self.uid = 0

    def __call__(self, s):
        self.lines.append("  " + s)

    def label(self, s):
        self.lines.append(s + ":")

    def comment(self, s):
        self.lines.append("  ; " + s)

    def newlabel(self, base):
        self.uid += 1
        return "L_%s_%d" % (base, self.uid)

    def vmem(self, s, tag=None):
        self(s)
        self.vm.append(tag)

    def lds(self, s, tag=None):
        self(s)
        self.lg.append(tag)

    def wait_vm(self, tag):
        if tag not in self.vm:
            return
        idx = max(i for i, t in enumerate(self.vm) if t == tag)
        n = len(self.vm) - 1 - idx
        n = min(n, 63)
        self("s_waitcnt vmcnt(%d)" % n)
        self.vm = self.vm[len(self.vm) - n:] if n > 0 else []

    def wait_lg(self, tag):
        if tag not in self.lg:
            return
        idx = max(i for i, t in enumerate(self.lg) if t == tag)
        n = len(self.lg) - 1 - idx
        n = min(n, 15)
        self("s_waitcnt lgkmcnt(%d)" % n)
        self.lg = self.lg[len(self.lg) - n:] if n > 0 else []

    def has_vm(self, tag):
        return tag in self.vm

    def has_lg(self, tag):
        return tag in self.lg

    def wait_all(self, vm=True, lg=True):
        parts = []
        if vm:
            parts.append("vmcnt(0)")
            self.vm = []
        if lg:
            parts.append("lgkmcnt(0)")
            self.lg = []
        self("s_waitcnt " + " ".join(parts))

    def stamp(self, i):
        if not getattr(self, "prof", None):
            return
        self("s_memrealtime vcc")
        self("s_waitcnt lgkmcnt(0)")
        self.lg = []
        self("v_writelane_b32 v%d, vcc_lo, %d" % (self.prof, i))

    def stamp_store(self, srd_base, base_off, vtmp, swave, swg="s2", stmp="s94"):
        if not getattr(self, "prof", None):
            return
        self("s_mov_b64 exec, -1")
        self("s_lshl_b32 %s, %s, 4" % (stmp, swg))
        self("s_add_u32 %s, %s, %s" % (stmp, stmp, swave))
        self("s_lshl_b32 %s, %s, 8" % (stmp, stmp))
        self("s_add_u32 %s, %s, 0x%x" % (stmp, stmp, base_off))
        self("v_mbcnt_lo_u32_b32 v%d, -1, 0" % vtmp)
        self("v_mbcnt_hi_u32_b32 v%d, -1, v%d" % (vtmp, vtmp))
        self("v_lshlrev_b32 v%d, 2, v%d" % (vtmp, vtmp))
        self("buffer_store_dword v%d, v%d, s[%d:%d], %s offen" % (self.prof, vtmp, srd_base, srd_base + 3, stmp))

    def text(self):
        return "\n".join(self.lines) + "\n"


def vr(a, n=1):
    return "v%d" % a if n == 1 else "v[%d:%d]" % (a, a + n - 1)


def sr(a, n=1):
    return "s%d" % a if n == 1 else "s[%d:%d]" % (a, a + n - 1)


def find_div_magic(d, maxq):
    for S in range(8, 25):
        M = ((1 << S) + d - 1) // d
        if M >= (1 << 24) or M * maxq >= (1 << 32):
            continue
        if all(((q * M) >> S) == q // d for q in range(maxq)):
            return M, S
    raise RuntimeError("no magic")


def srd(a, base, lo, hi, off, nrec, stride=0):
    if off is None:
        a("s_mov_b32 s%d, s%d" % (base, lo))
        if stride:
            a("s_or_b32 s%d, s%d, 0x%x" % (base + 1, hi, stride << 16))
        else:
            a("s_mov_b32 s%d, s%d" % (base + 1, hi))
    else:
        a("s_add_u32 s%d, s%d, %s" % (base, lo, off))
        a("s_addc_u32 s%d, s%d, 0" % (base + 1, hi))
        assert not stride
    a("s_mov_b32 s%d, 0x%x" % (base + 2, nrec))
    a("s_mov_b32 s%d, 0x20000" % (base + 3))


def dpp_scan(a, op, v, tmp=None, pk=False):
    steps = ["row_shr:1 row_mask:0xf bank_mask:0xf bound_ctrl:0",
             "row_shr:2 row_mask:0xf bank_mask:0xf bound_ctrl:0",
             "row_shr:4 row_mask:0xf bank_mask:0xf bound_ctrl:0",
             "row_shr:8 row_mask:0xf bank_mask:0xf bound_ctrl:0",
             "row_bcast:15 row_mask:0xa bank_mask:0xf",
             "row_bcast:31 row_mask:0xc bank_mask:0xf"]
    for st in steps:
        a("s_nop 1")
        a("%s_dpp %s, %s, %s %s" % (op, vr(v), vr(v), vr(v), st))


def dpp_reduce_pk_sum(a, vpk, vsum, vt):
    steps = ["row_shr:1 row_mask:0xf bank_mask:0xf bound_ctrl:0",
             "row_shr:2 row_mask:0xf bank_mask:0xf bound_ctrl:0",
             "row_shr:4 row_mask:0xf bank_mask:0xf bound_ctrl:0",
             "row_shr:8 row_mask:0xf bank_mask:0xf bound_ctrl:0",
             "row_bcast:15 row_mask:0xa bank_mask:0xf",
             "row_bcast:31 row_mask:0xc bank_mask:0xf"]
    a("v_mov_b32 %s, 0" % vr(vt))
    for st in steps:
        a("s_nop 1")
        a("v_mov_b32_dpp %s, %s %s" % (vr(vt), vr(vpk), st))
        a("v_add_f32_dpp %s, %s, %s %s" % (vr(vsum), vr(vsum), vr(vsum), st))
        a("s_nop 0")
        a("v_pk_max_u16 %s, %s, %s" % (vr(vpk), vr(vpk), vr(vt)))


def gen_k1(p):
    F = p.F
    NT = 640
    a = Asm()
    a.prof = 124 if p.prof else None
    name = "gs_part_kernel"
    G_BASE = 4096
    A_BASE = G_BASE + 512 * F
    STEP = NT * 16
    nfill = (1024 * F + STEP - 1) // STEP
    lds_size = A_BASE + nfill * STEP
    lds_size = max(lds_size, p.k1_lds_min)
    nG = (512 * F + STEP - 1) // STEP
    nA = nfill
    st_flags = p.st_flags

    vT16, vT8, vFour = 1, 2, 3
    tmp = 4
    vOUT, vIN, vANG, vB4, vRK, vM = 16, 32, 48, 56, 72, 88
    vT16b = 90
    vZero = 91
    vCP = 92
    S_OUT, S_IN, S_ANG, S_M, S_AO, S_GO, S_WS = 4, 8, 12, 16, 20, 24, 28
    sFULL = 32
    sK, sM1250, s4F = 34, 40, 41
    sCP = 42
    sMASK = 48
    sRA, sRG, sTAB, sST = 90, 91, 92, 93

    a.label(name)
    a("s_cmp_ge_u32 s2, %d" % NC)
    a("s_cbranch_scc1 L_k1_exit")
    if p.prof:
        a("s_memrealtime s[96:97]")
    a("s_load_dwordx4 s[80:83], s[0:1], 8")
    a("s_load_dwordx2 s[84:85], s[0:1], 32")
    a("s_load_dwordx2 s[86:87], s[0:1], 0")
    a("s_load_dwordx2 s[88:89], s[0:1], 104")
    a("v_lshlrev_b32 %s, 4, v0" % vr(vT16))
    a("v_lshlrev_b32 %s, 3, v0" % vr(vT8))
    a("v_mov_b32 %s, 4" % vr(vFour))
    a("v_mov_b32 %s, 0" % vr(vZero))
    for k in range(1, 4):
        a("v_add_u32 %s, %d, %s" % (vr(tmp + k), 10000 * k, vr(vT16)))
        a("v_add_u32 %s, %d, %s" % (vr(tmp + 4 + k), 5000 * k, vr(vT8)))
    a("v_add_u32 %s, %d, %s" % (vr(vT16b), 4 * STEP, vr(vT16)))
    a("v_lshrrev_b32 %s, 6, v0" % vr(tmp + 8))
    a("s_mul_i32 s94, s2, 40000")
    a("s_mul_i32 s95, s2, 20000")
    a("s_mul_i32 s35, s2, 5000")
    a("v_readfirstlane_b32 s3, %s" % vr(tmp + 8))
    a("s_mov_b32 s%d, %d" % (sK, 6871948))
    a("s_mov_b32 s%d, %d" % (sM1250, -1250))
    a("s_mov_b32 s%d, %d" % (s4F, 4 * F))
    for r in range(1, 7):
        a("s_mov_b32 s%d, %d" % (sCP + r - 1, r * STEP))
    a("s_waitcnt lgkmcnt(0)")
    if p.prof:
        a("v_mov_b32 v124, 0")
        a("s_nop 0")
        a("v_writelane_b32 v124, s96, 0")
    srd(a, S_OUT, 82, 83, "s94", 40000)
    srd(a, S_IN, 80, 81, "s94", 40000)
    srd(a, S_ANG, 84, 85, "s95", 20000)
    srd(a, S_M, 86, 87, "s35", 5000)
    off16 = [vT16] + [tmp + k for k in range(1, 4)]
    off8 = [vT8] + [tmp + 4 + k for k in range(1, 4)]
    for k in range(4):
        a.vmem("buffer_load_dwordx4 %s, %s, %s, 0 offen %s" % (vr(vOUT + 4 * k, 4), vr(off16[k]), sr(S_OUT, 4), p.ld1), "out%d" % k)
    for k in range(4):
        a.vmem("buffer_load_dwordx4 %s, %s, %s, 0 offen %s" % (vr(vIN + 4 * k, 4), vr(off16[k]), sr(S_IN, 4), p.ld1), "in%d" % k)
        a.vmem("buffer_load_dwordx2 %s, %s, %s, 0 offen %s" % (vr(vANG + 2 * k, 2), vr(off8[k]), sr(S_ANG, 4), p.ld1), "ang%d" % k)
    a.vmem("buffer_load_dwordx2 %s, %s, %s, 0 offen" % (vr(vM, 2), vr(vT8), sr(S_M, 4)), "m")
    a("s_mul_i32 s94, s2, %d" % (1024 * F))
    a("s_mul_i32 s95, s2, %d" % (512 * F))
    a("s_add_u32 s95, s95, 0x%x" % WS_G)
    srd(a, S_AO, 88, 89, "s94", 1024 * F)
    srd(a, S_GO, 88, 89, "s95", 512 * F)
    srd(a, S_WS, 88, 89, None, WS_SIZE)
    a("s_mul_i32 s%d, s2, %d" % (sRA, RSTR))
    a("s_add_u32 s%d, s%d, 0x%x" % (sRA, sRA, WS_RA))
    a("s_mul_i32 s%d, s2, %d" % (sRG, RSTR // 2))
    a("s_add_u32 s%d, s%d, 0x%x" % (sRG, sRG, WS_RG))
    a("s_lshl_b32 s%d, s2, 10" % sTAB)
    a("s_add_u32 s%d, s%d, 0x%x" % (sTAB, sTAB, WS_TAB))
    a("s_lshl_b32 s%d, s2, 3" % sST)
    a("s_add_u32 s%d, s%d, 0x%x" % (sST, sST, WS_ST))
    z = vCP
    for i in range(4):
        a("v_mov_b32 %s, 0" % vr(z + i))
        a("v_mov_b32 %s, -1" % vr(z + 4 + i))
    a.lds("ds_write_b128 %s, %s" % (vr(vT16), vr(z, 4)))
    for r in range(nfill):
        off = A_BASE + r * STEP
        if off <= 65535:
            a.lds("ds_write_b128 %s, %s offset:%d" % (vr(vT16), vr(z + 4, 4), off))
        else:
            a.lds("ds_write_b128 %s, %s offset:%d" % (vr(vT16b), vr(z + 4, 4), off - 4 * STEP))
    a("v_cmp_gt_u32 vcc, %d, v0" % EPB)
    a("s_mov_b64 %s, vcc" % sr(sFULL, 2))
    a.wait_all(vm=False)
    a.stamp(1)
    a("s_barrier")
    a.stamp(2)
    a("s_mov_b64 exec, %s" % sr(sFULL, 2))
    for k in range(4):
        a.wait_vm("out%d" % k)
        if k == 0:
            a.stamp(3)
        for j in range(4):
            r = 4 * k + j
            a("v_mul_hi_u32_u24 %s, s%d, %s" % (vr(vB4 + r), sK, vr(vOUT + r)))
            a("v_lshlrev_b32 %s, 3, %s" % (vr(vOUT + r), vr(vOUT + r)))
        for j in range(4):
            r = 4 * k + j
            a("v_lshlrev_b32 %s, 2, %s" % (vr(vB4 + r), vr(vB4 + r)))
        for j in range(4):
            r = 4 * k + j
            a.lds("ds_add_rtn_u32 %s, %s, %s" % (vr(vRK + r), vr(vB4 + r), vr(vFour)), "rk%d" % k)
            a("v_mad_i32_i24 %s, %s, s%d, %s" % (vr(vOUT + r), vr(vB4 + r), sM1250, vr(vOUT + r)))
    a.stamp(4)
    for k in range(4):
        a.wait_vm("ang%d" % k)
        for j in range(4):
            r = 4 * k + j
            a("v_lshl_or_b32 %s, %s, 13, %s" % (vr(vIN + r), vr(vIN + r), vr(vOUT + r)))
        if a.has_lg("rk%d" % k):
            a.wait_lg("rk%d" % k)
        for j in range(4):
            r = 4 * k + j
            a("v_mad_u32_u24 %s, %s, %d, %s" % (vr(tmp + j), vr(vB4 + r), F, vr(vRK + r)))
            a("v_cmp_gt_u32 %s, s%d, %s" % (sr(sMASK + 2 * r, 2), s4F, vr(vRK + r)))
        for j in range(4):
            a("v_lshrrev_b32 %s, 1, %s" % (vr(tmp + 4 + j), vr(tmp + j)))
        for j in range(4):
            r = 4 * k + j
            a("s_mov_b64 exec, %s" % sr(sMASK + 2 * r, 2))
            a.lds("ds_write_b32 %s, %s offset:%d" % (vr(tmp + j), vr(vIN + r), A_BASE))
            op = "ds_write_b16" if (r % 2 == 0) else "ds_write_b16_d16_hi"
            a.lds("%s %s, %s offset:%d" % (op, vr(tmp + 4 + j), vr(vANG + r // 2), G_BASE))
        a("s_mov_b64 exec, %s" % sr(sFULL, 2))
    a.stamp(5)
    a("s_mov_b64 exec, -1")
    a.wait_vm("m")
    t = tmp
    a("s_mov_b32 s94, 0x7fff7fff")
    a("s_mov_b32 s95, 0xffff0000")
    a("v_and_b32 %s, s94, %s" % (vr(t), vr(vM)))
    a("v_and_b32 %s, s94, %s" % (vr(t + 1), vr(vM + 1)))
    a("v_pk_max_u16 %s, %s, %s" % (vr(t), vr(t), vr(t + 1)))
    a("v_and_b32 %s, s94, %s" % (vr(t + 2), vr(vANG)))
    for i in range(1, 8):
        a("v_and_b32 %s, s94, %s" % (vr(t + 3 + (i & 1)), vr(vANG + i)))
        a("s_nop 0")
        a("v_pk_max_u16 %s, %s, %s" % (vr(t + 2), vr(t + 2), vr(t + 3 + (i & 1))))
    a("v_lshrrev_b32 %s, 16, %s" % (vr(t + 1), vr(t)))
    a("v_and_b32 %s, 0xffff, %s" % (vr(t), vr(t)))
    a("v_max_u32 %s, %s, %s" % (vr(t), vr(t), vr(t + 1)))
    a("v_lshlrev_b32 %s, 16, %s" % (vr(t + 3), vr(t + 2)))
    a("v_and_b32 %s, s95, %s" % (vr(t + 2), vr(t + 2)))
    a("v_max_u32 %s, %s, %s" % (vr(t + 2), vr(t + 2), vr(t + 3)))
    a("v_or_b32 %s, %s, %s" % (vr(t), vr(t), vr(t + 2)))
    a("v_lshlrev_b32 %s, 16, %s" % (vr(t + 4), vr(vM)))
    a("v_and_b32 %s, s95, %s" % (vr(t + 5), vr(vM)))
    a("v_lshlrev_b32 %s, 16, %s" % (vr(t + 6), vr(vM + 1)))
    a("v_and_b32 %s, s95, %s" % (vr(t + 7), vr(vM + 1)))
    a("v_add_f32 %s, |%s|, |%s|" % (vr(t + 4), vr(t + 4), vr(t + 5)))
    a("v_add_f32 %s, |%s|, |%s|" % (vr(t + 6), vr(t + 6), vr(t + 7)))
    a("v_add_f32 %s, %s, %s" % (vr(t + 1), vr(t + 4), vr(t + 6)))
    dpp_reduce_pk_sum(a, t, t + 1, t + 2)
    a("s_mov_b32 exec_lo, 0")
    a("s_mov_b32 exec_hi, 0x80000000")
    a("v_and_b32 %s, 0xffff, %s" % (vr(t + 2), vr(t)))
    a("v_lshrrev_b32 %s, 16, %s" % (vr(t + 3), vr(t)))
    a.lds("ds_max_u32 %s, %s offset:2048" % (vr(vZero), vr(t + 2)))
    a.lds("ds_max_u32 %s, %s offset:2052" % (vr(vZero), vr(t + 3)))
    a.lds("ds_add_f32 %s, %s offset:2056" % (vr(vZero), vr(t + 1)))
    a("s_mov_b64 exec, -1")
    a.wait_all(vm=False)
    a.stamp(6)
    a("s_barrier")
    a.stamp(7)
    a("s_cmp_lg_u32 s3, 0")
    a("s_cbranch_scc1 L_k1_noscan")
    w = tmp
    a("v_lshlrev_b32 %s, 4, v0" % vr(w + 8))
    a("ds_read_b128 %s, %s" % (vr(w, 4), vr(vT16)))
    a("s_waitcnt lgkmcnt(0)")
    for i in range(4):
        a("v_subrev_u32 %s, s%d, %s" % (vr(w + i), s4F, vr(w + i)))
    for i in range(4):
        a("v_max_i32 %s, 0, %s" % (vr(w + i), vr(w + i)))
    a("v_add_u32 %s, %s, %s" % (vr(w + 6), vr(w), vr(w + 1)))
    a("v_add_u32 %s, %s, %s" % (vr(w + 7), vr(w + 6), vr(w + 2)))
    a("v_add_u32 %s, %s, %s" % (vr(w + 8), vr(w + 7), vr(w + 3)))
    a("v_mov_b32 %s, %s" % (vr(w + 9), vr(w + 8)))
    dpp_scan(a, "v_add_u32", w + 9)
    a("v_sub_u32 %s, %s, %s" % (vr(w + 4), vr(w + 9), vr(w + 8)))
    a("v_add_u32 %s, %s, %s" % (vr(w + 5), vr(w + 4), vr(w)))
    a("v_add_u32 %s, %s, %s" % (vr(w + 6), vr(w + 4), vr(w + 6)))
    a("v_add_u32 %s, %s, %s" % (vr(w + 7), vr(w + 4), vr(w + 7)))
    for i in range(4):
        a("v_lshl_or_b32 %s, %s, 16, %s" % (vr(vCP + i), vr(w + 4 + i), vr(w + i)))
    for i in range(4):
        a("v_subrev_u32 %s, s%d, %s" % (vr(w + 4 + i), s4F, vr(w + 4 + i)))
    a("ds_write_b128 %s, %s offset:1024" % (vr(vT16), vr(w + 4, 4)))
    a("buffer_store_dwordx4 %s, %s, %s, s%d offen %s" % (vr(vCP, 4), vr(vT16), sr(S_WS, 4), sTAB, st_flags))
    a("s_nop 1")
    a.label("L_k1_noscan")
    a("s_cmp_lg_u32 s3, 1")
    a("s_cbranch_scc1 L_k1_nostat")
    a("ds_read_b96 %s, %s offset:2048" % (vr(w, 3), vr(vZero)))
    a("s_waitcnt lgkmcnt(0)")
    a("v_lshl_or_b32 %s, %s, 16, %s" % (vr(w + 4), vr(w + 1), vr(w)))
    a("v_mov_b32 %s, %s" % (vr(w + 5), vr(w + 2)))
    a("s_mov_b64 exec, 1")
    a("buffer_store_dwordx2 %s, %s, %s, s%d offen %s" % (vr(w + 4, 2), vr(vZero), sr(S_WS, 4), sST, st_flags))
    a("s_mov_b64 exec, -1")
    a.label("L_k1_nostat")
    a.stamp(8)
    jobs = []
    for r in range(nG):
        jobs.append((G_BASE + r * STEP, S_GO, r))
    for r in range(nA):
        jobs.append((A_BASE + r * STEP, S_AO, r))
    for b0 in range(0, len(jobs), 8):
        batch = jobs[b0:b0 + 8]
        for i, (off, s, r) in enumerate(batch):
            if off <= 65535:
                a.lds("ds_read_b128 %s, %s offset:%d" % (vr(vCP + 4 * i, 4), vr(vT16), off), "cp%d" % i)
            else:
                a.lds("ds_read_b128 %s, %s offset:%d" % (vr(vCP + 4 * i, 4), vr(vT16b), off - 4 * STEP), "cp%d" % i)
        for i, (off, s, r) in enumerate(batch):
            a.wait_lg("cp%d" % i)
            so = "0" if r == 0 else "s%d" % (sCP + r - 1)
            if p.k1_voff:
                if r == 0:
                    vo = vT16
                else:
                    vo = tmp + 10 + (i & 1)
                    a("v_add_u32 %s, %d, %s" % (vr(vo), r * STEP, vr(vT16)))
                a.vmem("buffer_store_dwordx4 %s, %s, %s, 0 offen %s" % (vr(vCP + 4 * i, 4), vr(vo), sr(s, 4), st_flags))
            else:
                a.vmem("buffer_store_dwordx4 %s, %s, %s, %s offen %s" % (vr(vCP + 4 * i, 4), vr(vT16), sr(s, 4), so, st_flags))
        a("s_nop 1")
    a.wait_all(vm=False)
    a.stamp(9)
    a("s_barrier")
    a.stamp(10)
    for r in range(16):
        lab = "L_k1_r%d" % r
        a("s_andn2_b64 exec, %s, %s" % (sr(sFULL, 2), sr(sMASK + 2 * r, 2)))
        a("s_cbranch_scc0 %s" % lab)
        v = tmp + (r & 3)
        a("ds_read_b32 %s, %s offset:1024" % (vr(v), vr(vB4 + r)))
        a("s_waitcnt lgkmcnt(0)")
        a("v_add_u32 %s, %s, %s" % (vr(v), vr(v), vr(vRK + r)))
        a("v_lshrrev_b32 %s, 1, %s" % (vr(v + 4), vr(v)))
        a("buffer_store_dword %s, %s, %s, s%d offen %s" % (vr(vIN + r), vr(v), sr(S_WS, 4), sRA, st_flags))
        op = "buffer_store_short" if (r % 2 == 0) else "buffer_store_short_d16_hi"
        a("%s %s, %s, %s, s%d offen %s" % (op, vr(vANG + r // 2), vr(v + 4), sr(S_WS, 4), sRG, st_flags))
        a.label(lab)
    a.label("L_k1_end")
    if p.prof:
        a("s_mov_b64 exec, -1")
        a.stamp(11)
        a("s_waitcnt vmcnt(0)")
        a.stamp(12)
        a.stamp_store(S_WS, 58 << 20, tmp, "s3")
    a.label("L_k1_exit")
    a("s_endpgm")
    return name, a.text(), NT, lds_size, 128 if p.prof else 124


INV2PI = 0x3e22f983
INV2PI_LO = None

import struct
def f2u(x):
    return struct.unpack("<I", struct.pack("<f", x))[0]
def u2f(u):
    return struct.unpack("<f", struct.pack("<I", u))[0]
import math
_hi = u2f(INV2PI)
from fractions import Fraction
_INV2PI_EXACT = Fraction(15915494309189533576888376337251436203445964574046, 10**50)
INV2PI_LO = f2u(float(_INV2PI_EXACT - Fraction(_hi)))


def gen_k2(p):
    F = p.F
    NT = p.NT2
    NW = NT // 64
    NQ = 64 * F
    assert NQ % NT == 0
    NK = NQ // NT
    NR = 4 * NK
    QP = F // 4
    D = p.D
    a = Asm()
    a.prof = 3 if p.prof else None
    name = "gather_scatter__molecular_angular_gemnet__graph_kernel"
    ACC = 0
    PSTR = 5120
    ZR = (6 * PSTR + NT * 16 - 1) // (NT * 16)
    LIST = 45056
    PARAM = LIST + 4096
    lds_size = PARAM + 64
    assert ZR * NT * 16 <= LIST
    REG = NT // 4

    vA = 4
    vANG = vA + NR
    vRA = vANG + NR // 2
    vRG = vRA + 1
    vM = vRG + 1
    if vM % 2:
        vM += 1
    vG = vM + 2 * (NR + 1)
    vR = vG + 12
    vME = vR + 4
    vDIST = vME + 2
    vTAB = vDIST + 1
    vWD = vTAB + 1
    vWU = vWD + 1
    vZero = vWU + 1
    vT = vZero + 1
    if vT % 2:
        vT += 1
    nv_used = vT + 54
    assert nv_used <= 128, nv_used
    vT16, vT8 = 1, 2
    vX = 3

    S_WS, S_M, S_DIST, S_OUT, S_ME = 4, 8, 12, 20, 24
    sBIN, sWAVE, sMODE = 3, 30, 31
    sWSBF, sWRBF, sCEN = 32, 80, 96
    sRV = 100

    M_, S_ = find_div_magic(QP, NQ)

    a.label(name)
    a("s_cmp_ge_u32 s2, %d" % NB)
    a("s_cbranch_scc1 L_k2_exit")
    if p.prof:
        a("s_memrealtime s[96:97]")
    a("s_load_dwordx16 s[8:23], s[0:1], 40")
    a("s_load_dwordx2 s[24:25], s[0:1], 0")
    a("s_load_dwordx2 s[26:27], s[0:1], 24")
    a("s_load_dwordx2 s[28:29], s[0:1], 104")
    a("s_and_b32 s3, s2, 7")
    a("s_lshl_b32 s3, s3, 5")
    a("s_lshr_b32 s30, s2, 3")
    a("s_add_u32 s3, s3, s30")
    a("v_lshlrev_b32 %s, 4, v0" % vr(vT16))
    a("v_lshlrev_b32 %s, 3, v0" % vr(vT8))
    a("v_lshrrev_b32 %s, 6, v0" % vr(vX))
    a("v_mov_b32 %s, 0" % vr(vZero))
    a("s_mov_b32 s100, %d" % M_)
    a("v_readfirstlane_b32 s%d, %s" % (sWAVE, vr(vX)))
    a("s_mov_b32 s101, %d" % (1020 * F))
    for k in range(NK):
        q = vT + 16
        a("v_add_u32 %s, %d, v0" % (vr(q), k * NT))
        a("v_mul_u32_u24 %s, s100, %s" % (vr(q + 1), vr(q)))
        a("v_lshlrev_b32 %s, 4, %s" % (vr(q), vr(q)))
        a("v_lshrrev_b32 %s, %d, %s" % (vr(q + 1), S_, vr(q + 1)))
        a("v_mad_u32_u24 %s, %s, s101, %s" % (vr(vT + k), vr(q + 1), vr(q)))
        a("v_lshrrev_b32 %s, 1, %s" % (vr(vT + 8 + k), vr(vT + k)))
    a("v_lshlrev_b32 %s, 10, v0" % vr(vT + 16))
    a("v_and_b32 %s, 63, v0" % vr(vT + 17))
    a("v_lshlrev_b32 %s, 5, %s" % (vr(vT + 17), vr(vT + 17)))
    a("v_and_b32 %s, 7, v0" % vr(vT + 18))
    a("v_lshlrev_b32 %s, 2, %s" % (vr(vT + 18), vr(vT + 18)))
    a("v_lshlrev_b32 %s, 1, v0" % vr(vT + 19))
    a("s_waitcnt lgkmcnt(0)")
    if p.prof:
        a("v_mov_b32 v3, 0")
        a("s_nop 0")
        a("v_writelane_b32 v3, s96, 0")
        a.stamp(1)
    srd(a, S_WS, 28, 29, None, WS_SIZE)
    a("s_lshl_b32 s28, s3, 2")
    a("s_add_u32 s28, s28, 0x%x" % WS_TAB)
    a("s_mov_b32 s29, 0x%x" % WS_ST)
    a("s_cmp_gt_u32 s%d, 3" % sWAVE)
    a("s_cbranch_scc1 L_k2_notab")
    a("buffer_load_dword %s, %s, %s, s28 offen" % (vr(vTAB), vr(vT + 16), sr(S_WS, 4)))
    a.label("L_k2_notab")
    a("s_cmp_lg_u32 s%d, 4" % sWAVE)
    a("s_cbranch_scc1 L_k2_nost")
    a("buffer_load_dwordx4 %s, %s, %s, s29 offen" % (vr(vT + 24, 4), vr(vT + 17), sr(S_WS, 4)))
    a("buffer_load_dwordx4 %s, %s, %s, s29 offen offset:16" % (vr(vT + 28, 4), vr(vT + 17), sr(S_WS, 4)))
    a.label("L_k2_nost")
    a.vm.append("role")
    a("s_mul_i32 s28, s3, %d" % (4 * F))
    a("s_mul_i32 s29, s3, %d" % (2 * F))
    a("s_add_u32 s29, s29, 0x%x" % WS_G)
    for k in range(NK):
        a.vmem("buffer_load_dwordx4 %s, %s, %s, s28 offen %s" % (vr(vA + 4 * k, 4), vr(vT + k), sr(S_WS, 4), p.ld2), "A%d" % k)
    for k in range(NK):
        a.vmem("buffer_load_dwordx2 %s, %s, %s, s29 offen %s" % (vr(vANG + 2 * k, 2), vr(vT + 8 + k), sr(S_WS, 4), p.ld2), "ANG%d" % k)
    a("s_load_dwordx16 s[32:47], s[14:15], 0")
    a("s_load_dwordx16 s[48:63], s[14:15], 64")
    a("s_load_dwordx16 s[64:79], s[14:15], 128")
    a("s_load_dwordx16 s[80:95], s[12:13], 0")
    a("s_load_dwordx4 s[96:99], s[8:9], 0")
    a.vmem("global_load_dword %s, %s, s[16:17]" % (vr(vWD), vr(vT + 18)), "wd")
    a.vmem("global_load_dword %s, %s, s[18:19]" % (vr(vWU), vr(vT + 18)), "wu")
    srd(a, S_M, 24, 25, None, E, stride=8)
    a("s_mul_i32 s28, s3, %d" % (EPB * 2))
    srd(a, S_DIST, 26, 27, "s28", EPB * 2)
    a("s_mul_i32 s28, s3, %d" % (EPB * 8))
    srd(a, S_OUT, 20, 21, "s28", EPB * 8)
    srd(a, S_ME, 24, 25, "s28", EPB * 8)
    a.vmem("buffer_load_ushort %s, %s, %s, 0 offen" % (vr(vDIST), vr(vT + 19), sr(S_DIST, 4)), "dist")
    a.vmem("buffer_load_dwordx2 %s, %s, %s, 0 offen" % (vr(vME, 2), vr(vT8), sr(S_ME, 4)), "me")
    for i in range(4):
        a("v_mov_b32 %s, 0" % vr(vT + 20 + i))
    for r in range(ZR):
        a("ds_write_b128 %s, %s offset:%d" % (vr(vT16), vr(vT + 20, 4), r * NT * 16))
    a.stamp(2)
    a("s_cmp_gt_u32 s%d, 3" % sWAVE)
    a("s_cbranch_scc1 L_k2_nolist")
    n_after_role = len(a.vm) - 1
    a("s_waitcnt vmcnt(%d)" % n_after_role)
    t = vT + 24
    a("v_and_b32 %s, 0xffff, %s" % (vr(t), vr(vTAB)))
    a("v_lshrrev_b32 %s, 16, %s" % (vr(t + 1), vr(vTAB)))
    a("v_lshrrev_b32 %s, 2, %s" % (vr(t), vr(t)))
    a("s_mov_b32 s28, %d" % RSTR)
    a("v_mad_u32_u24 %s, v0, s28, %s" % (vr(t + 1), vr(t + 1)))
    a("v_mov_b32 %s, %s" % (vr(t + 2), vr(t)))
    dpp_scan(a, "v_add_u32", t + 2)
    a("s_nop 0")
    a("v_readlane_b32 s28, %s, 63" % vr(t + 2))
    a("v_sub_u32 %s, %s, %s" % (vr(t + 3), vr(t + 2), vr(t)))
    a("s_lshl_b32 s29, s%d, 2" % sWAVE)
    a("v_mov_b32 %s, s29" % vr(t + 4))
    a("v_mov_b32 %s, s28" % vr(t + 5))
    a("ds_write_b32 %s, %s offset:%d" % (vr(t + 4), vr(t + 5), PARAM + 16))
    a("s_cmp_gt_u32 s28, %d" % REG)
    a("s_cbranch_scc1 L_k2_nolist")
    a("s_mul_i32 s29, s%d, %d" % (sWAVE, REG * 4))
    a("v_lshlrev_b32 %s, 2, %s" % (vr(t + 3), vr(t + 3)))
    a("v_add_u32 %s, s29, %s" % (vr(t + 3), vr(t + 3)))
    a.label("L_k2_listloop")
    a("v_cmp_lt_u32 vcc, 0, %s" % vr(t))
    a("s_and_b64 exec, exec, vcc")
    a("s_cbranch_scc0 L_k2_listdone")
    a("ds_write_b32 %s, %s offset:%d" % (vr(t + 3), vr(t + 1), LIST))
    a("v_add_u32 %s, -1, %s" % (vr(t), vr(t)))
    a("v_add_u32 %s, 4, %s" % (vr(t + 3), vr(t + 3)))
    a("v_add_u32 %s, 4, %s" % (vr(t + 1), vr(t + 1)))
    a("s_branch L_k2_listloop")
    a.label("L_k2_listdone")
    a("s_mov_b64 exec, -1")
    a.label("L_k2_nolist")
    a("s_cmp_lg_u32 s%d, 4" % sWAVE)
    a("s_cbranch_scc1 L_k2_nostat")
    a("s_waitcnt vmcnt(%d)" % n_after_role)
    a("v_pk_max_u16 %s, %s, %s" % (vr(t), vr(t), vr(t + 2)))
    a("v_pk_max_u16 %s, %s, %s" % (vr(t + 4), vr(t + 4), vr(t + 6)))
    a("v_add_f32 %s, %s, %s" % (vr(t + 1), vr(t + 1), vr(t + 3)))
    a("v_add_f32 %s, %s, %s" % (vr(t + 5), vr(t + 5), vr(t + 7)))
    a("v_pk_max_u16 %s, %s, %s" % (vr(t), vr(t), vr(t + 4)))
    a("v_add_f32 %s, %s, %s" % (vr(t + 1), vr(t + 1), vr(t + 5)))
    dpp_reduce_pk_sum(a, t, t + 1, t + 2)
    a("v_and_b32 %s, 0xffff, %s" % (vr(t + 2), vr(t)))
    a("v_lshrrev_b32 %s, 16, %s" % (vr(t + 3), vr(t)))
    a("v_lshrrev_b32 %s, 7, %s" % (vr(t + 4), vr(t + 2)))
    a("v_lshlrev_b32 %s, 16, %s" % (vr(t + 5), vr(t + 2)))
    a("v_mul_f32 %s, 0x%x, %s" % (vr(t + 5), f2u(640000.0 / 128.0), vr(t + 5)))
    a("v_cmp_le_f32 vcc, %s, %s" % (vr(t + 5), vr(t + 1)))
    a("v_cmp_lt_u32 s[28:29], 16, %s" % vr(t + 4))
    a("s_and_b64 vcc, vcc, s[28:29]")
    a("s_mov_b32 s100, 255")
    a("v_cmp_gt_u32 s[28:29], s100, %s" % vr(t + 4))
    a("s_and_b64 vcc, vcc, s[28:29]")
    a("s_movk_i32 s100, 0x4281")
    a("v_cmp_gt_u32 s[28:29], s100, %s" % vr(t + 3))
    a("s_and_b64 vcc, vcc, s[28:29]")
    a("v_sub_u32 %s, 270, %s" % (vr(t + 8), vr(t + 4)))
    a("v_lshlrev_b32 %s, 23, %s" % (vr(t + 8), vr(t + 8)))
    a("v_subrev_u32 %s, 16, %s" % (vr(t + 9), vr(t + 4)))
    a("v_lshlrev_b32 %s, 23, %s" % (vr(t + 9), vr(t + 9)))
    a("v_cndmask_b32 %s, 0, 1, vcc" % vr(t + 10))
    a("v_mov_b32 %s, 0" % vr(t + 11))
    a("s_mov_b32 exec_lo, 0")
    a("s_mov_b32 exec_hi, 0x80000000")
    a("ds_write_b128 %s, %s offset:%d" % (vr(vZero), vr(t + 8, 4), PARAM))
    a("s_mov_b64 exec, -1")
    a.label("L_k2_nostat")

    idx_t = [vT + 16 + i for i in range(4)]
    gcount = [0]

    def gather(r):
        src = vA + r if r < NR else vRA
        it = idx_t[gcount[0] & 3]
        gcount[0] += 1
        a("v_lshrrev_b32 %s, 13, %s" % (vr(it), vr(src)))
        a.vmem("buffer_load_dwordx2 %s, %s, %s, 0 idxen" % (vr(vM + 2 * r, 2), vr(it), sr(S_M, 4)), "G%d" % r)

    issued = 0
    waitedA = set()

    def gather_next():
        nonlocal issued
        r = issued
        if r < NR:
            k = r // 4
            if k not in waitedA:
                a.wait_vm("A%d" % k)
                waitedA.add(k)
        else:
            a.wait_vm("RA")
        gather(r)
        issued += 1

    a.stamp(3)
    for _ in range(p.PRE):
        gather_next()
    a.wait_all(vm=False)
    a.stamp(4)
    a("s_barrier")
    a.stamp(5)
    t = vT + 24
    a("v_lshrrev_b32 %s, %d, v0" % (vr(t + 9), 8) if REG == 256 else "s_nop 0")
    assert REG == 256
    a("v_lshlrev_b32 %s, 2, %s" % (vr(t + 9), vr(t + 9)))
    a("v_lshlrev_b32 %s, 2, v0" % vr(t + 10))
    a("ds_read_b128 %s, %s offset:%d" % (vr(t, 4), vr(vZero), PARAM))
    a("ds_read_b128 %s, %s offset:%d" % (vr(t + 4, 4), vr(vZero), PARAM + 16))
    a("ds_read_b32 %s, %s offset:%d" % (vr(t + 8), vr(t + 9), PARAM + 16))
    a("ds_read_b32 %s, %s offset:%d" % (vr(t + 11), vr(t + 10), LIST))
    a("v_and_b32 %s, %d, v0" % (vr(t + 12), REG - 1))
    a("s_waitcnt lgkmcnt(0)")
    a("v_cmp_lt_u32 %s, %s, %s" % (sr(sRV, 2), vr(t + 12), vr(t + 8)))
    a("v_max3_u32 %s, %s, %s, %s" % (vr(t + 4), vr(t + 4), vr(t + 5), vr(t + 6)))
    a("v_max_u32 %s, %s, %s" % (vr(t + 4), vr(t + 4), vr(t + 7)))
    a("v_bfrev_b32 %s, 1" % vr(t + 13))
    a("v_cndmask_b32 %s, %s, %s, %s" % (vr(t + 11), vr(t + 13), vr(t + 11), sr(sRV, 2)))
    a("v_cmp_ge_u32 vcc, %d, %s" % (REG, vr(t + 4)))
    a("v_lshrrev_b32 %s, 1, %s" % (vr(t + 12), vr(t + 11)))
    a("s_mov_b32 s28, 0x%x" % WS_RA)
    a("s_mov_b32 s29, 0x%x" % WS_RG)
    a("v_cndmask_b32 %s, 0, %s, vcc" % (vr(t + 2), vr(t + 2)))
    a.vmem("buffer_load_dword %s, %s, %s, s28 offen" % (vr(vRA), vr(t + 11), sr(S_WS, 4)), "RA")
    a.vmem("buffer_load_ushort %s, %s, %s, s29 offen" % (vr(vRG), vr(t + 12), sr(S_WS, 4)), "RG")
    a("v_readfirstlane_b32 s%d, %s" % (sMODE, vr(t + 2)))
    vSC, vINV = vT + 50, vT + 51
    a("v_mov_b32 %s, %s" % (vr(vSC), vr(t)))
    a("v_mov_b32 %s, %s" % (vr(vINV), vr(t + 1)))
    if p.force_slow:
        a("s_mov_b32 s%d, 0" % sMODE)
    while issued < min(D, NR):
        gather_next()

    a.stamp(6)
    a.wait_vm("me")
    a("s_cmp_gt_u32 s%d, 9" % sWAVE)
    a("s_cbranch_scc1 L_k2_nopro")
    rb = vT + 24
    u = vT + 32
    w2 = vT + 40
    a("v_lshlrev_b32 %s, 16, %s" % (vr(vDIST), vr(vDIST)))

    def rnd_pair(x0, x1, tp):
        a("v_cvt_pk_bf16_f32 %s, %s, %s" % (vr(tp), vr(x0), vr(x1)))
        a("s_nop 0")
        a("v_lshlrev_b32 %s, 16, %s" % (vr(x0), vr(tp)))
        a("v_and_b32 %s, 0xffff0000, %s" % (vr(x1), vr(tp)))

    for i in range(4):
        a("s_lshl_b32 s28, s%d, 16" % (sCEN + i))
        a("s_and_b32 s29, s%d, 0xffff0000" % (sCEN + i))
        a("v_subrev_f32 %s, s28, %s" % (vr(rb + 2 * i), vr(vDIST)))
        a("v_subrev_f32 %s, s29, %s" % (vr(rb + 2 * i + 1), vr(vDIST)))
    for i in range(4):
        rnd_pair(rb + 2 * i, rb + 2 * i + 1, u + i)
    for i in range(8):
        a("v_mul_f32 %s, %s, %s" % (vr(rb + i), vr(rb + i), vr(rb + i)))
    for i in range(4):
        rnd_pair(rb + 2 * i, rb + 2 * i + 1, u + i)
    for i in range(8):
        a("v_mul_f32 %s, 0x%x, %s" % (vr(rb + i), f2u(-10.0), vr(rb + i)))
    for i in range(4):
        rnd_pair(rb + 2 * i, rb + 2 * i + 1, u + i)
    for i in range(8):
        a("v_mul_f32 %s, 0x%x, %s" % (vr(rb + i), f2u(math.log2(math.e)), vr(rb + i)))
    for i in range(8):
        a("v_exp_f32 %s, %s" % (vr(rb + i), vr(rb + i)))
    a("s_nop 0")
    for i in range(4):
        rnd_pair(rb + 2 * i, rb + 2 * i + 1, u + i)
    def bc(r):
        return (r & 1)
    tp = [28, 28]
    for r in range(8):
        for l in range(3):
            row = 3 * r + l
            for h in range(2):
                sw = sWSBF + 2 * row + h
                a("s_lshl_b32 s28, s%d, 16" % sw)
                a("s_and_b32 s29, s%d, 0xffff0000" % sw)
                dst = vG + 4 * l + 2 * h
                src = rb + (r & ~1)
                o = r & 1
                if r == 0:
                    a("v_pk_mul_f32 %s, %s, s[28:29] op_sel:[%d,0] op_sel_hi:[%d,1]" % (vr(dst, 2), vr(src, 2), o, o))
                else:
                    a("v_pk_fma_f32 %s, %s, s[28:29], %s op_sel:[%d,0,0] op_sel_hi:[%d,1,1]" % (vr(dst, 2), vr(src, 2), vr(dst, 2), o, o))
        for h in range(2):
            sw = sWRBF + 2 * r + h
            a("s_lshl_b32 s28, s%d, 16" % sw)
            a("s_and_b32 s29, s%d, 0xffff0000" % sw)
            dst = vR + 2 * h
            src = rb + (r & ~1)
            o = r & 1
            if r == 0:
                a("v_pk_mul_f32 %s, %s, s[28:29] op_sel:[%d,0] op_sel_hi:[%d,1]" % (vr(dst, 2), vr(src, 2), o, o))
            else:
                a("v_pk_fma_f32 %s, %s, s[28:29], %s op_sel:[%d,0,0] op_sel_hi:[%d,1,1]" % (vr(dst, 2), vr(src, 2), vr(dst, 2), o, o))
    a.label("L_k2_nopro")
    a.stamp(7)
    sMAG, sNEG, sSC, sNSC, sINV, sI2P, s3P, sHM = 32, 34, 36, 38, 40, 42, 44, 46
    sWDf, sWUf = 48, 64
    a("s_mov_b32 s%d, 0x4b400000" % sMAG)
    a("s_mov_b32 s%d, 0x4b400000" % (sMAG + 1))
    a("s_mov_b32 s%d, 0xb4c00000" % sNEG)
    a("s_mov_b32 s%d, 0xb4bfffff" % (sNEG + 1))
    a("v_readfirstlane_b32 s%d, %s" % (sSC, vr(vSC)))
    a("v_readfirstlane_b32 s%d, %s" % (sINV, vr(vINV)))
    a("s_mov_b32 s%d, 0x%x" % (sI2P, INV2PI))
    a("s_mov_b32 s%d, 0x%x" % (sI2P + 1, INV2PI))
    a("s_mov_b32 s%d, 0x40400000" % s3P)
    a("s_mov_b32 s%d, 0x40400000" % (s3P + 1))
    a("s_mov_b32 s%d, 0xffff0000" % sHM)
    a("s_mov_b32 s%d, s%d" % (sSC + 1, sSC))
    a("s_xor_b32 s%d, s%d, 0x80000000" % (sNSC, sSC))
    a("s_xor_b32 s%d, s%d, 0x80000000" % (sNSC + 1, sSC))
    a("s_mov_b32 s%d, s%d" % (sINV + 1, sINV))
    a.wait_vm("wu") if a.has_vm("wu") else None
    for i in range(8):
        a("v_readlane_b32 s%d, %s, %d" % (80 + i, vr(vWD), i))
        a("v_readlane_b32 s%d, %s, %d" % (88 + i, vr(vWU), i))
    for i in range(8):
        a("s_lshl_b32 s%d, s%d, 16" % (sWDf + 2 * i, 80 + i))
        a("s_and_b32 s%d, s%d, s%d" % (sWDf + 2 * i + 1, 80 + i, sHM))
        a("s_lshl_b32 s%d, s%d, 16" % (sWUf + 2 * i, 88 + i))
        a("s_and_b32 s%d, s%d, s%d" % (sWUf + 2 * i + 1, 88 + i, sHM))
    a("s_cmp_eq_u32 s%d, 0" % sMODE)
    a("s_cbranch_scc1 L_k2_slow")
    saved_vm = list(a.vm)
    a.stamp(8)

    c0 = vT + 20
    AA, T3, RV, C1, C3, C1S, C2S, C3S = [c0 + 2 * i for i in range(8)]
    PK = vT + 36
    MF = vT + 38
    PR = [vT + 42, vT + 54]
    PRD = vT + 42
    AD = vT + 37

    def angle_math(src_dw, single=False):
        if single:
            a("v_lshlrev_b32 %s, 16, %s" % (vr(AA), vr(src_dw)))
            a("v_lshlrev_b32 %s, 16, %s" % (vr(AA + 1), vr(src_dw)))
        else:
            a("v_lshlrev_b32 %s, 16, %s" % (vr(AA), vr(src_dw)))
            a("v_and_b32 %s, s%d, %s" % (vr(AA + 1), sHM, vr(src_dw)))
        a("v_pk_mul_f32 %s, %s, %s" % (vr(T3, 2), vr(AA, 2), sr(s3P, 2)))
        a("v_pk_mul_f32 %s, %s, %s" % (vr(RV, 2), vr(AA, 2), sr(sI2P, 2)))
        a("v_cvt_pk_bf16_f32 %s, %s, %s" % (vr(PK), vr(T3), vr(T3 + 1)))
        a("v_cos_f32 %s, %s" % (vr(C1), vr(RV)))
        a("v_cos_f32 %s, %s" % (vr(C1 + 1), vr(RV + 1)))
        a("v_lshlrev_b32 %s, 16, %s" % (vr(T3), vr(PK)))
        a("v_and_b32 %s, s%d, %s" % (vr(T3 + 1), sHM, vr(PK)))
        a("v_pk_mul_f32 %s, %s, %s" % (vr(C1S, 2), vr(C1, 2), sr(sSC, 2)))
        a("v_pk_mul_f32 %s, %s, %s" % (vr(RV, 2), vr(T3, 2), sr(sI2P, 2)))
        a("v_pk_add_f32 %s, %s, %s" % (vr(AA, 2), vr(C1, 2), vr(C1, 2)))
        a("v_cos_f32 %s, %s" % (vr(C3), vr(RV)))
        a("v_cos_f32 %s, %s" % (vr(C3 + 1), vr(RV + 1)))
        a("v_pk_fma_f32 %s, %s, %s, %s" % (vr(C2S, 2), vr(C1S, 2), vr(AA, 2), sr(sNSC, 2)))
        a("v_pk_mul_f32 %s, %s, %s" % (vr(C3S, 2), vr(C3, 2), sr(sSC, 2)))

    def process(r, half):
        src = vA + r if r < NR else vRA
        m = vM + 2 * r
        a("v_and_b32 %s, 0x1ff8, %s" % (vr(AD), vr(src)))
        a.wait_vm("G%d" % r)
        a("v_lshlrev_b32 %s, 16, %s" % (vr(MF), vr(m)))
        a("v_and_b32 %s, s%d, %s" % (vr(MF + 1), sHM, vr(m)))
        a("v_lshlrev_b32 %s, 16, %s" % (vr(MF + 2), vr(m + 1)))
        a("v_and_b32 %s, s%d, %s" % (vr(MF + 3), sHM, vr(m + 1)))
        cs = [C1S, C2S, C3S]
        for l in range(3):
            for h in range(2):
                d = PRD + 4 * l + 2 * h
                a("v_pk_fma_f32 %s, %s, %s, %s op_sel:[0,%d,0] op_sel_hi:[1,%d,1]" % (vr(d, 2), vr(MF + 2 * h, 2), vr(cs[l], 2), sr(sMAG, 2), half, half))
        for i in range(6):
            d = PRD + 2 * i
            a("v_lshl_add_u64 %s, %s, 0, %s" % (vr(d, 2), vr(d, 2), sr(sNEG, 2)))
        if r < NR:
            a("v_cmpx_ne_u32 vcc, -1, %s" % vr(src))
        else:
            a("s_mov_b64 exec, %s" % sr(sRV, 2))
        for i in range(6):
            a("ds_add_u64 %s, %s offset:%d" % (vr(AD), vr(PRD + 2 * i, 2), ACC + i * PSTR))
        a("s_mov_b64 exec, -1")

    for r in range(NR + 1):
        if r < NR:
            if r % 2 == 0:
                if r % 4 == 0:
                    a.wait_vm("ANG%d" % (r // 4)) if a.has_vm("ANG%d" % (r // 4)) else None
                angle_math(vANG + r // 2)
        else:
            a.wait_vm("RG") if a.has_vm("RG") else None
            angle_math(vRG, single=True)
        if issued <= NR:
            gather_next()
        process(r, (r % 2) if r < NR else 0)
        if r % 4 == 3 or r == NR:
            a.stamp(9 + r // 4)
    a("s_waitcnt lgkmcnt(0)")
    a.stamp(14)
    a("s_barrier")
    a.stamp(15)
    a("s_cmp_gt_u32 s%d, 9" % sWAVE)
    a("s_cbranch_scc1 L_k2_end")
    SS = vT + 20
    for i in range(6):
        a("ds_read_b64 %s, %s offset:%d" % (vr(SS + 2 * i, 2), vr(vT8), ACC + i * PSTR))
    a("s_waitcnt lgkmcnt(0)")
    for i in range(6):
        a("v_ashrrev_i32 %s, 31, %s" % (vr(vT + 32 + i), vr(SS + 2 * i)))
    for i in range(6):
        a("v_sub_u32 %s, %s, %s" % (vr(SS + 2 * i + 1), vr(SS + 2 * i + 1), vr(vT + 32 + i)))
    for i in range(12):
        a("v_cvt_f32_i32 %s, %s" % (vr(SS + i), vr(SS + i)))
    for i in range(6):
        a("v_pk_mul_f32 %s, %s, %s" % (vr(SS + 2 * i, 2), vr(SS + 2 * i, 2), sr(sINV, 2)))
    a.label("L_k2_epi")
    SP = vT + 32
    for l in range(3):
        for jh in range(2):
            d = SP + 4 * l + 2 * jh
            for i in range(4):
                src = SS + 4 * l + (i & ~1)
                o = i & 1
                w = sWDf + 4 * i + 2 * jh
                if i == 0:
                    a("v_pk_mul_f32 %s, %s, %s op_sel:[%d,0] op_sel_hi:[%d,1]" % (vr(d, 2), vr(src, 2), sr(w, 2), o, o))
                else:
                    a("v_pk_fma_f32 %s, %s, %s, %s op_sel:[%d,0,0] op_sel_hi:[%d,1,1]" % (vr(d, 2), vr(src, 2), sr(w, 2), vr(d, 2), o, o))
    AG = vT + 44
    for jh in range(2):
        d = AG + 2 * jh
        for l in range(3):
            if l == 0:
                a("v_pk_mul_f32 %s, %s, %s" % (vr(d, 2), vr(SP + 2 * jh, 2), vr(vG + 2 * jh, 2)))
            else:
                a("v_pk_fma_f32 %s, %s, %s, %s" % (vr(d, 2), vr(SP + 4 * l + 2 * jh, 2), vr(vG + 4 * l + 2 * jh, 2), vr(d, 2)))
    UP = vT + 48
    for kh in range(2):
        d = UP + 2 * kh
        for j in range(4):
            src = AG + (j & ~1)
            o = j & 1
            w = sWUf + 4 * j + 2 * kh
            if j == 0:
                a("v_pk_mul_f32 %s, %s, %s op_sel:[%d,0] op_sel_hi:[%d,1]" % (vr(d, 2), vr(src, 2), sr(w, 2), o, o))
            else:
                a("v_pk_fma_f32 %s, %s, %s, %s op_sel:[%d,0,0] op_sel_hi:[%d,1,1]" % (vr(d, 2), vr(src, 2), sr(w, 2), vr(d, 2), o, o))
    MEF = vT + 20
    a("v_lshlrev_b32 %s, 16, %s" % (vr(MEF), vr(vME)))
    a("v_and_b32 %s, s%d, %s" % (vr(MEF + 1), sHM, vr(vME)))
    a("v_lshlrev_b32 %s, 16, %s" % (vr(MEF + 2), vr(vME + 1)))
    a("v_and_b32 %s, s%d, %s" % (vr(MEF + 3), sHM, vr(vME + 1)))
    for kh in range(2):
        a("v_pk_fma_f32 %s, %s, %s, %s" % (vr(UP + 2 * kh, 2), vr(UP + 2 * kh, 2), vr(vR + 2 * kh, 2), vr(MEF + 2 * kh, 2)))
    a("v_cvt_pk_bf16_f32 %s, %s, %s" % (vr(AG), vr(UP), vr(UP + 1)))
    a("v_cvt_pk_bf16_f32 %s, %s, %s" % (vr(AG + 1), vr(UP + 2), vr(UP + 3)))
    a("buffer_store_dwordx2 %s, %s, %s, 0 offen" % (vr(AG, 2), vr(vT8), sr(S_OUT, 4)))
    if p.prof:
        a.stamp(16)
        a("s_waitcnt vmcnt(0)")
        a.stamp(17)
        a("s_branch L_k2_end")
    else:
        a("s_endpgm")

    a.label("L_k2_slow")
    a("s_waitcnt vmcnt(0)")
    sC_HI, sC_LO = 80, 81
    a("s_mov_b32 s%d, 0x%x" % (sC_HI, INV2PI))
    a("s_mov_b32 s%d, 0x%x" % (sC_LO, INV2PI_LO))
    X = vT + 20
    H = vT + 24
    L_ = vT + 28
    Cc = vT + 32
    SM = vT + 36
    SAD = vT + 16
    SI = vT + 17

    def slow_rec(vsrcA, ang_expr_lo, vang, maskmode):
        a("v_lshrrev_b32 %s, 13, %s" % (vr(SI), vr(vsrcA)))
        a("buffer_load_dwordx2 %s, %s, %s, 0 idxen" % (vr(SM, 2), vr(SI), sr(S_M, 4)))
        a("v_and_b32 %s, 0x1ff8, %s" % (vr(SAD), vr(vsrcA)))
        if ang_expr_lo:
            a("v_lshlrev_b32 %s, 16, %s" % (vr(X), vr(vang)))
        else:
            a("v_and_b32 %s, s%d, %s" % (vr(X), sHM, vr(vang)))
        a("v_add_f32 %s, %s, %s" % (vr(X + 1), vr(X), vr(X)))
        a("v_mul_f32 %s, s%d, %s" % (vr(X + 2), s3P, vr(X)))
        a("v_cvt_pk_bf16_f32 %s, %s, %s" % (vr(X + 2), vr(X + 2), vr(X + 2)))
        a("s_nop 0")
        a("v_lshlrev_b32 %s, 16, %s" % (vr(X + 2), vr(X + 2)))
        for i in range(3):
            a("v_mul_f32 %s, s%d, %s" % (vr(H + i), sC_HI, vr(X + i)))
        for i in range(3):
            a("v_fma_f32 %s, %s, s%d, -%s" % (vr(L_ + i), vr(X + i), sC_HI, vr(H + i)))
        for i in range(3):
            a("v_fma_f32 %s, %s, s%d, %s" % (vr(L_ + i), vr(X + i), sC_LO, vr(L_ + i)))
        for i in range(3):
            a("v_fract_f32 %s, %s" % (vr(H + i), vr(H + i)))
        for i in range(3):
            a("v_add_f32 %s, %s, %s" % (vr(H + i), vr(H + i), vr(L_ + i)))
        for i in range(3):
            a("v_cos_f32 %s, %s" % (vr(Cc + i), vr(H + i)))
        a("s_waitcnt vmcnt(0)")
        a("v_lshlrev_b32 %s, 16, %s" % (vr(MF), vr(SM)))
        a("v_and_b32 %s, s%d, %s" % (vr(MF + 1), sHM, vr(SM)))
        a("v_lshlrev_b32 %s, 16, %s" % (vr(MF + 2), vr(SM + 1)))
        a("v_and_b32 %s, s%d, %s" % (vr(MF + 3), sHM, vr(SM + 1)))
        for l in range(3):
            for h in range(2):
                d = PRD + 4 * l + 2 * h
                src = Cc + (l & ~1)
                o = l & 1
                a("v_pk_mul_f32 %s, %s, %s op_sel:[0,%d] op_sel_hi:[1,%d]" % (vr(d, 2), vr(MF + 2 * h, 2), vr(src, 2), o, o))
        if maskmode == "A":
            a("v_cmpx_ne_u32 vcc, -1, %s" % vr(vsrcA))
        for l in range(3):
            for i in range(4):
                a("ds_add_f32 %s, %s offset:%d" % (vr(SAD), vr(PRD + 4 * l + i), ACC + (2 * l + i // 2) * PSTR + 4 * (i & 1)))
        if maskmode == "A":
            a("s_mov_b64 exec, -1")

    for r in range(NR):
        slow_rec(vA + r, r % 2 == 0, vANG + r // 2, "A")
    sCc, sEnt, sRem, sBase, sI = 82, 83, 84, 85, 86
    a("s_mov_b32 s%d, s%d" % (sCc, sWAVE))
    a("v_and_b32 %s, 63, v0" % vr(vT + 18))
    a("v_lshlrev_b32 %s, 2, %s" % (vr(vT + 18), vr(vT + 18)))
    a.label("L_k2_sp_piece")
    a("s_lshl_b32 s87, s%d, 10" % sCc)
    a("s_lshl_b32 s88, s3, 2")
    a("s_add_u32 s87, s87, s88")
    a("s_add_u32 s87, s87, 0x%x" % WS_TAB)
    a("v_mov_b32 %s, s87" % vr(vT + 19))
    a("buffer_load_dword %s, %s, %s, 0 offen" % (vr(vT + 19), vr(vT + 19), sr(S_WS, 4)))
    a("s_waitcnt vmcnt(0)")
    a("v_readfirstlane_b32 s%d, %s" % (sEnt, vr(vT + 19)))
    a("s_and_b32 s%d, s%d, 0xffff" % (sRem, sEnt))
    a("s_lshr_b32 s%d, s%d, 16" % (sBase, sEnt))
    a("s_mul_i32 s87, s%d, %d" % (sCc, RSTR))
    a("s_add_u32 s%d, s%d, s87" % (sBase, sBase))
    a("s_mov_b32 s%d, 0" % sI)
    a.label("L_k2_sp_batch")
    a("s_cmp_ge_u32 s%d, s%d" % (sI, sRem))
    a("s_cbranch_scc1 L_k2_sp_next")
    a("v_add_u32 %s, s%d, %s" % (vr(vT + 19), sI, vr(vT + 18)))
    a("v_cmp_gt_u32 vcc, s%d, %s" % (sRem, vr(vT + 19)))
    a("v_add_u32 %s, s%d, %s" % (vr(vT + 19), sBase, vr(vT + 19)))
    a("s_mov_b64 exec, vcc")
    a("v_lshrrev_b32 %s, 1, %s" % (vr(vT + 15), vr(vT + 19)))
    a("s_mov_b32 s87, 0x%x" % WS_RA)
    a("s_mov_b32 s88, 0x%x" % WS_RG)
    a("buffer_load_dword %s, %s, %s, s87 offen" % (vr(vRA), vr(vT + 19), sr(S_WS, 4)))
    a("buffer_load_ushort %s, %s, %s, s88 offen" % (vr(vRG), vr(vT + 15), sr(S_WS, 4)))
    a("s_waitcnt vmcnt(0)")
    slow_rec(vRA, True, vRG, "none")
    a("s_mov_b64 exec, -1")
    a("s_add_u32 s%d, s%d, 256" % (sI, sI))
    a("s_branch L_k2_sp_batch")
    a.label("L_k2_sp_next")
    a("s_add_u32 s%d, s%d, %d" % (sCc, sCc, NW))
    a("s_cmp_lt_u32 s%d, %d" % (sCc, NC))
    a("s_cbranch_scc1 L_k2_sp_piece")
    a("s_waitcnt lgkmcnt(0)")
    a("s_barrier")
    a("s_cmp_gt_u32 s%d, 9" % sWAVE)
    a("s_cbranch_scc1 L_k2_end")
    for i in range(6):
        a("ds_read_b64 %s, %s offset:%d" % (vr(SS + 2 * i, 2), vr(vT8), ACC + i * PSTR))
    a("s_waitcnt lgkmcnt(0)")
    a("s_branch L_k2_epi")
    a.label("L_k2_end")
    a.stamp_store(S_WS, 60 << 20, vT, "s30", stmp="s28")
    a.label("L_k2_exit")
    a("s_endpgm")
    return name, a.text(), NT, lds_size, nv_used


def kernel_desc(name, nv, ns=102):
    acc = (nv + 3) // 4 * 4
    return """.amdhsa_kernel %s
  .amdhsa_next_free_vgpr %d
  .amdhsa_next_free_sgpr %d
  .amdhsa_accum_offset %d
  .amdhsa_group_segment_fixed_size 0
  .amdhsa_kernarg_size 112
  .amdhsa_user_sgpr_count 2
  .amdhsa_user_sgpr_kernarg_segment_ptr 1
  .amdhsa_system_sgpr_workgroup_id_x 1
  .amdhsa_float_denorm_mode_32 3
.end_amdhsa_kernel
""" % (name, nv, ns, acc)


def main():
    ap = argparse.ArgumentParser()
    ap.add_argument("-o", default="gather_scatter__molecular_angular_gemnet__graph.s")
    ap.add_argument("--F", type=int, default=48)
    ap.add_argument("--NT2", type=int, default=1024)
    ap.add_argument("--D", type=int, default=4)
    ap.add_argument("--PRE", type=int, default=1)
    ap.add_argument("--st", default="")
    ap.add_argument("--force_slow", action="store_true")
    ap.add_argument("--k1_lds_min", type=int, default=0)
    ap.add_argument("--k1_voff", type=int, default=1)
    ap.add_argument("--prof", action="store_true")
    ap.add_argument("--ld1", default="")
    ap.add_argument("--ld2", default="")
    p = ap.parse_args()
    p.st_flags = p.st.replace("+", " ")
    p.ld1 = p.ld1.replace("+", " ")
    p.ld2 = p.ld2.replace("+", " ")
    n1, t1, nt1, lds1, nv1 = gen_k1(p)
    n2, t2, nt2, lds2, nv2 = gen_k2(p)
    out = []
    out.append("; @launch kernel=%s grid=(256,1,1) block=(%d,1,1) lds=%d" % (n1, nt1, lds1))
    out.append("; @launch kernel=%s grid=(256,1,1) block=(%d,1,1) lds=%d" % (n2, nt2, lds2))
    out.append('.amdgcn_target "amdgcn-amd-amdhsa--gfx950"')
    out.append(".text")
    for n, t in ((n1, t1), (n2, t2)):
        out.append(".globl %s" % n)
        out.append(".p2align 8")
        out.append(".type %s,@function" % n)
        out.append(t)
    out.append('.section .rodata,"a"')
    out.append(".p2align 6")
    out.append(kernel_desc(n1, nv1))
    out.append(".p2align 6")
    out.append(kernel_desc(n2, nv2))
    open(p.o, "w").write("\n".join(out))


if __name__ == "__main__":
    main()
```

```python
import sys, argparse, struct, math
from fractions import Fraction
sys.path.insert(0, "exp")
from gen import Asm, vr, sr, srd, dpp_scan, f2u, u2f, INV2PI, INV2PI_LO

E = 160000
T = 2560000
NB = 256
EPB = 625
NC = 256
CH = 10000
F = 40
PSZ = 256
GOFF = 4 * F
MOFF = 240

WS_P = 0
WS_R = 16 << 20
RSTR = 81920
WS_ST = 40 << 20
WS_SIZE = 64 << 20

DPP_STEPS = ["row_shr:1 row_mask:0xf bank_mask:0xf bound_ctrl:0",
             "row_shr:2 row_mask:0xf bank_mask:0xf bound_ctrl:0",
             "row_shr:4 row_mask:0xf bank_mask:0xf bound_ctrl:0",
             "row_shr:8 row_mask:0xf bank_mask:0xf bound_ctrl:0",
             "row_bcast:15 row_mask:0xa bank_mask:0xf",
             "row_bcast:31 row_mask:0xc bank_mask:0xf"]


def dpp_multi(a, ops, steps=DPP_STEPS):
    n = len(ops)
    a("s_nop 1")
    for st in steps:
        if n == 1:
            a("s_nop 1")
        elif n == 2:
            a("s_nop 0")
        for op, v in ops:
            a("%s_dpp %s, %s, %s %s" % (op, vr(v), vr(v), vr(v), st))


def gen_k1(p):
    NT = 1024
    NA = 1000
    a = Asm()
    a.prof = 100 if p.prof else None
    name = "gs_part_kernel"
    STG = 16384
    lds_size = STG + 65536
    st = p.st_flags
    ld = p.ld1

    vT16, vT8, vT4, vTwo, vZero, vT16b = 1, 2, 3, 4, 5, 6
    tmp = 8
    vOUT, vIN, vANG, vB4, vRK, vM = 24, 34, 44, 50, 60, 70
    vCP = 72
    vSM, vSS = 88, 89
    S_OUT, S_IN, S_ANG, S_M, S_PO, S_WS = 4, 8, 12, 16, 20, 24
    sFULL = 28
    sK, sM1250, s2F = 30, 31, 32
    sC1, sC2, sC3 = 33, 34, 35
    sO1, sO2, sG1, sG2 = 36, 37, 38, 39
    sRB, sST = 40, 41
    sH7, sHM = 42, 43
    sMASK = 48

    a.label(name)
    a("s_cmp_ge_u32 s2, %d" % NC)
    a("s_cbranch_scc1 L_k1_exit")
    if p.prof:
        a("s_memrealtime s[96:97]")
    a("s_load_dwordx4 s[80:83], s[0:1], 8")
    a("s_load_dwordx2 s[84:85], s[0:1], 32")
    a("s_load_dwordx2 s[86:87], s[0:1], 0")
    a("s_load_dwordx2 s[88:89], s[0:1], 104")
    a("v_lshlrev_b32 %s, 4, v0" % vr(vT16))
    a("v_lshlrev_b32 %s, 3, v0" % vr(vT8))
    a("v_lshlrev_b32 %s, 2, v0" % vr(vT4))
    a("v_mov_b32 %s, 2" % vr(vTwo))
    a("v_mov_b32 %s, 0" % vr(vZero))
    a("v_add_u32 %s, %d, %s" % (vr(vT16b), STG, vr(vT16)))
    a("v_lshrrev_b32 %s, 6, v0" % vr(tmp))
    a("v_cmp_gt_u32 vcc, %d, v0" % NA)
    a("s_mul_i32 s94, s2, 40000")
    a("s_mul_i32 s95, s2, 20000")
    a("s_mul_i32 s93, s2, 5000")
    a("v_readfirstlane_b32 s3, %s" % vr(tmp))
    a("s_mov_b64 %s, vcc" % sr(sFULL, 2))
    z = vCP
    for i in range(4):
        a("v_mov_b32 %s, 0" % vr(z + i))
        a("v_mov_b32 %s, -1" % vr(z + 4 + i))
    a("s_mov_b32 s%d, %d" % (sK, 6871948))
    a("s_mov_b32 s%d, %d" % (sM1250, -1250))
    a("s_mov_b32 s%d, %d" % (s2F, 2 * F))
    a("s_mov_b32 s%d, 16384" % sC1)
    a("s_mov_b32 s%d, 32768" % sC2)
    a("s_mov_b32 s%d, 49152" % sC3)
    a("s_mov_b32 s%d, 16000" % sO1)
    a("s_mov_b32 s%d, 32000" % sO2)
    a("s_mov_b32 s%d, 8000" % sG1)
    a("s_mov_b32 s%d, 16000" % sG2)
    a("s_mov_b32 s%d, 0x7fff7fff" % sH7)
    a("s_mov_b32 s%d, 0xffff0000" % sHM)

    def lds_init():
        a.lds("ds_write_b128 %s, %s" % (vr(vT16), vr(z, 4)))
        for r in range(4):
            a.lds("ds_write_b128 %s, %s offset:%d" % (vr(vT16b), vr(z + 4, 4), r * 16384))

    if p.k1_init_first:
        lds_init()
    a("s_waitcnt lgkmcnt(0)")
    a.lg = []
    if p.prof:
        a("v_mov_b32 v100, 0")
        a("s_nop 0")
        a("v_writelane_b32 v100, s96, 0")
    srd(a, S_OUT, 82, 83, "s94", 40000)
    srd(a, S_IN, 80, 81, "s94", 40000)
    srd(a, S_ANG, 84, 85, "s95", 20000)
    srd(a, S_M, 86, 87, "s93", 5000)
    a.vmem("buffer_load_dwordx2 %s, %s, %s, 0 offen %s" % (vr(vM, 2), vr(vT8), sr(S_M, 4), ld), "m")
    a("s_mov_b64 exec, %s" % sr(sFULL, 2))

    def ld_out(k):
        if k < 2:
            a.vmem("buffer_load_dwordx4 %s, %s, %s, %s offen %s" % (vr(vOUT + 4 * k, 4), vr(vT16), sr(S_OUT, 4), "0" if k == 0 else "s%d" % sO1, ld), "out%d" % k)
        else:
            a.vmem("buffer_load_dwordx2 %s, %s, %s, s%d offen %s" % (vr(vOUT + 8, 2), vr(vT8), sr(S_OUT, 4), sO2, ld), "out2")

    def ld_in(k):
        if k < 2:
            a.vmem("buffer_load_dwordx4 %s, %s, %s, %s offen %s" % (vr(vIN + 4 * k, 4), vr(vT16), sr(S_IN, 4), "0" if k == 0 else "s%d" % sO1, ld), "in%d" % k)
            a.vmem("buffer_load_dwordx2 %s, %s, %s, %s offen %s" % (vr(vANG + 2 * k, 2), vr(vT8), sr(S_ANG, 4), "0" if k == 0 else "s%d" % sG1, ld), "ang%d" % k)
        else:
            a.vmem("buffer_load_dwordx2 %s, %s, %s, s%d offen %s" % (vr(vIN + 8, 2), vr(vT8), sr(S_IN, 4), sO2, ld), "in2")
            a.vmem("buffer_load_dword %s, %s, %s, s%d offen %s" % (vr(vANG + 4), vr(vT4), sr(S_ANG, 4), sG2, ld), "ang2")

    for k in range(3):
        ld_out(k)
    npre = p.k1_pre
    for k in range(npre):
        ld_in(k)
    a("s_mov_b64 exec, -1")
    a("s_lshl_b32 s94, s2, 16")
    srd(a, S_PO, 88, 89, "s94", 65536)
    srd(a, S_WS, 88, 89, None, WS_SIZE)
    a("s_mul_i32 s%d, s2, %d" % (sRB, RSTR))
    a("s_add_u32 s%d, s%d, 0x%x" % (sRB, sRB, WS_R))
    a("s_lshl_b32 s%d, s2, 3" % sST)
    a("s_add_u32 s%d, s%d, 0x%x" % (sST, sST, WS_ST))
    if not p.k1_init_first:
        lds_init()
        a.wait_all(vm=False)
    a.stamp(1)
    a("s_barrier")
    a.stamp(2)
    a("s_mov_b64 exec, %s" % sr(sFULL, 2))

    def recs(k):
        return range(4 * k, 4 * k + 4) if k < 2 else range(8, 10)

    def stage1(k):
        a.wait_vm("out%d" % k)
        for r in recs(k):
            a("v_mul_hi_u32_u24 %s, s%d, %s" % (vr(vB4 + r), sK, vr(vOUT + r)))
        for r in recs(k):
            a("v_lshlrev_b32 %s, 3, %s" % (vr(vOUT + r), vr(vOUT + r)))
            a("v_lshlrev_b32 %s, 2, %s" % (vr(vB4 + r), vr(vB4 + r)))
        for r in recs(k):
            a.lds("ds_add_rtn_u32 %s, %s, %s" % (vr(vRK + r), vr(vB4 + r), vr(vTwo)), "rk%d" % k)
        for r in recs(k):
            a("v_mad_i32_i24 %s, %s, s%d, %s" % (vr(vOUT + r), vr(vB4 + r), sM1250, vr(vOUT + r)))

    def stage2(k):
        a.wait_vm("ang%d" % k)
        for r in recs(k):
            a("v_lshl_or_b32 %s, %s, 13, %s" % (vr(vIN + r), vr(vIN + r), vr(vOUT + r)))
        a.wait_lg("rk%d" % k)
        for j, r in enumerate(recs(k)):
            a("v_lshl_add_u32 %s, %s, 6, %s" % (vr(tmp + 4 + j), vr(vB4 + r), vr(vRK + r)))
            a("v_cmp_gt_u32 %s, s%d, %s" % (sr(sMASK + 2 * r, 2), s2F, vr(vRK + r)))
        for j, r in enumerate(recs(k)):
            a("v_add_u32 %s, %s, %s" % (vr(tmp + j), vr(tmp + 4 + j), vr(vRK + r)))
        for j, r in enumerate(recs(k)):
            a("s_mov_b64 exec, %s" % sr(sMASK + 2 * r, 2))
            a.lds("ds_write_b32 %s, %s offset:%d" % (vr(tmp + j), vr(vIN + r), STG))
            op = "ds_write_b16" if (r % 2 == 0) else "ds_write_b16_d16_hi"
            a.lds("%s %s, %s offset:%d" % (op, vr(tmp + 4 + j), vr(vANG + r // 2), STG + GOFF))
        a("s_mov_b64 exec, %s" % sr(sFULL, 2))

    def mstats():
        a("s_mov_b64 exec, -1")
        a.wait_vm("m")
        t = tmp
        a("v_and_b32 %s, s%d, %s" % (vr(t), sH7, vr(vM)))
        a("v_and_b32 %s, s%d, %s" % (vr(t + 1), sH7, vr(vM + 1)))
        a("v_lshlrev_b32 %s, 16, %s" % (vr(t + 4), vr(vM)))
        a("v_and_b32 %s, s%d, %s" % (vr(t + 5), sHM, vr(vM)))
        a("v_pk_max_u16 %s, %s, %s" % (vr(t), vr(t), vr(t + 1)))
        a("v_lshlrev_b32 %s, 16, %s" % (vr(t + 6), vr(vM + 1)))
        a("v_and_b32 %s, s%d, %s" % (vr(t + 7), sHM, vr(vM + 1)))
        a("v_lshrrev_b32 %s, 16, %s" % (vr(t + 1), vr(t)))
        a("v_and_b32 %s, 0xffff, %s" % (vr(t), vr(t)))
        a("v_add_f32 %s, |%s|, |%s|" % (vr(t + 4), vr(t + 4), vr(t + 5)))
        a("v_add_f32 %s, |%s|, |%s|" % (vr(t + 6), vr(t + 6), vr(t + 7)))
        a("v_max_u32 %s, %s, %s" % (vr(vSM), vr(t), vr(t + 1)))
        a("v_add_f32 %s, %s, %s" % (vr(vSS), vr(t + 4), vr(t + 6)))
        a("s_nop 0")
        dpp_multi(a, [("v_max_u32", vSM), ("v_add_f32", vSS)])
        a("s_mov_b32 exec_lo, 0")
        a("s_mov_b32 exec_hi, 0x80000000")
        a.lds("ds_max_u32 %s, %s offset:2048" % (vr(vZero), vr(vSM)))
        a.lds("ds_add_f32 %s, %s offset:2056" % (vr(vZero), vr(vSS)))
        a("s_mov_b64 exec, %s" % sr(sFULL, 2))

    nxt = npre
    for k in range(3):
        if nxt < 3:
            ld_in(nxt)
            nxt += 1
        if k == 0:
            mstats()
        stage1(k)
        if k == 0:
            a.stamp(3)
    a.stamp(4)
    for k in range(3):
        stage2(k)
    a.stamp(5)
    a("s_mov_b64 exec, -1")
    t = tmp
    for i in range(5):
        a("v_and_b32 %s, s%d, %s" % (vr(t + i), sH7, vr(vANG + i)))
    a("v_pk_max_u16 %s, %s, %s" % (vr(t), vr(t), vr(t + 1)))
    a("v_pk_max_u16 %s, %s, %s" % (vr(t + 2), vr(t + 2), vr(t + 3)))
    a("v_pk_max_u16 %s, %s, %s" % (vr(t), vr(t), vr(t + 4)))
    a("s_nop 0")
    a("v_pk_max_u16 %s, %s, %s" % (vr(t), vr(t), vr(t + 2)))
    a("s_nop 0")
    a("v_lshrrev_b32 %s, 16, %s" % (vr(t + 1), vr(t)))
    a("v_and_b32 %s, 0xffff, %s" % (vr(t), vr(t)))
    a("v_max_u32 %s, %s, %s" % (vr(t), vr(t), vr(t + 1)))
    a("v_cndmask_b32 %s, 0, %s, %s" % (vr(t), vr(t), sr(sFULL, 2)))
    dpp_multi(a, [("v_max_u32", t)])
    a("s_mov_b32 exec_lo, 0")
    a("s_mov_b32 exec_hi, 0x80000000")
    a.lds("ds_max_u32 %s, %s offset:2052" % (vr(vZero), vr(t)))
    a("s_mov_b64 exec, -1")
    a.wait_all(vm=False)
    a.stamp(6)
    a("s_barrier")
    a.stamp(7)
    a("s_cmp_lg_u32 s3, 0")
    a("s_cbranch_scc1 L_k1_noscan")
    w = tmp
    a("ds_read_b128 %s, %s" % (vr(w, 4), vr(vT16)))
    a("v_lshlrev_b32 %s, 10, v0" % vr(w + 10))
    a("s_waitcnt lgkmcnt(0)")
    for i in range(4):
        a("v_subrev_u32 %s, s%d, %s" % (vr(w + i), s2F, vr(w + i)))
    for i in range(4):
        a("v_max_i32 %s, 0, %s" % (vr(w + i), vr(w + i)))
    a("v_add_u32 %s, %s, %s" % (vr(w + 5), vr(w), vr(w + 1)))
    a("v_add_u32 %s, %s, %s" % (vr(w + 6), vr(w + 5), vr(w + 2)))
    a("v_add_u32 %s, %s, %s" % (vr(w + 8), vr(w + 6), vr(w + 3)))
    a("v_mov_b32 %s, %s" % (vr(w + 9), vr(w + 8)))
    dpp_scan(a, "v_add_u32", w + 9)
    a("v_sub_u32 %s, %s, %s" % (vr(w + 4), vr(w + 9), vr(w + 8)))
    a("v_add_u32 %s, %s, %s" % (vr(w + 7), vr(w + 4), vr(w + 6)))
    a("v_add_u32 %s, %s, %s" % (vr(w + 6), vr(w + 4), vr(w + 5)))
    a("v_add_u32 %s, %s, %s" % (vr(w + 5), vr(w + 4), vr(w)))
    for i in range(4):
        a("v_lshrrev_b32 %s, 1, %s" % (vr(w + i), vr(w + i)))
    vMT = [vCP + i for i in range(4)] if not p.meta4 else [104 + 4 * i for i in range(4)]
    for i in range(4):
        a("v_lshl_or_b32 %s, %s, 15, %s" % (vr(vMT[i]), vr(w + 4 + i), vr(w + i)))
    for i in range(4):
        a("v_lshlrev_b32 %s, 2, %s" % (vr(w + 4 + i), vr(w + 4 + i)))
    for i in range(4):
        a("v_subrev_u32 %s, %d, %s" % (vr(w + 4 + i), 8 * F, vr(w + 4 + i)))
    a("ds_write_b128 %s, %s offset:1024" % (vr(vT16), vr(w + 4, 4)))
    for i in range(4):
        if p.meta4:
            a("buffer_store_dwordx4 %s, %s, %s, 0 offen offset:%d %s" % (vr(vMT[i], 4), vr(w + 10), sr(S_PO, 4), MOFF + 256 * i, st))
        else:
            a("buffer_store_dword %s, %s, %s, 0 offen offset:%d %s" % (vr(vMT[i]), vr(w + 10), sr(S_PO, 4), MOFF + 256 * i, st))
    a.label("L_k1_noscan")
    a("s_cmp_lg_u32 s3, 1")
    a("s_cbranch_scc1 L_k1_nostat")
    a("ds_read_b96 %s, %s offset:2048" % (vr(w, 3), vr(vZero)))
    a("s_waitcnt lgkmcnt(0)")
    a("v_lshl_or_b32 %s, %s, 16, %s" % (vr(w + 4), vr(w + 1), vr(w)))
    a("v_mov_b32 %s, %s" % (vr(w + 5), vr(w + 2)))
    a("s_mov_b64 exec, 1")
    a("buffer_store_dwordx2 %s, %s, %s, s%d offen %s" % (vr(w + 4, 2), vr(vZero), sr(S_WS, 4), sST, st))
    a("s_mov_b64 exec, -1")
    a.label("L_k1_nostat")
    a.stamp(8)
    cp = vCP + 4
    for r in range(4):
        a.lds("ds_read_b128 %s, %s offset:%d" % (vr(cp + 4 * r, 4), vr(vT16b), r * 16384), "cp%d" % r)
    a("s_mov_b32 exec_lo, 0x7fff7fff")
    a("s_mov_b32 exec_hi, 0x7fff7fff")
    for r in range(4):
        a.wait_lg("cp%d" % r)
        so = "0" if r == 0 else "s%d" % (sC1 + r - 1)
        a.vmem("buffer_store_dwordx4 %s, %s, %s, %s offen %s" % (vr(cp + 4 * r, 4), vr(vT16), sr(S_PO, 4), so, st))
    a("s_mov_b64 exec, -1")
    a.stamp(9)
    a("s_barrier")
    a.stamp(10)
    a("s_mov_b64 exec, %s" % sr(sFULL, 2))
    rb = vOUT
    for r in range(10):
        a.lds("ds_read_b32 %s, %s offset:1024" % (vr(rb + r), vr(vB4 + r)), "rb%d" % r)
    pr = vB4
    for r in range(10):
        d = tmp + 2 * (r & 3)
        a("v_mov_b32 %s, %s" % (vr(d), vr(vIN + r)))
        if r % 2 == 0:
            a("v_mov_b32 %s, %s" % (vr(d + 1), vr(vANG + r // 2)))
        else:
            a("v_lshrrev_b32 %s, 16, %s" % (vr(d + 1), vr(vANG + r // 2)))
        a.wait_lg("rb%d" % r)
        a("v_lshl_add_u32 %s, %s, 2, %s" % (vr(rb + r), vr(vRK + r), vr(rb + r)))
        a("s_andn2_b64 exec, %s, %s" % (sr(sFULL, 2), sr(sMASK + 2 * r, 2)))
        a("buffer_store_dwordx2 %s, %s, %s, s%d offen %s" % (vr(d, 2), vr(rb + r), sr(S_WS, 4), sRB, st))
        a("s_mov_b64 exec, %s" % sr(sFULL, 2))
    a.label("L_k1_end")
    if p.prof:
        a("s_mov_b64 exec, -1")
        a.stamp(11)
        a("s_waitcnt vmcnt(0)")
        a.stamp(12)
        a.stamp_store(S_WS, 58 << 20, tmp, "s3")
    a.label("L_k1_exit")
    a("s_endpgm")
    return name, a.text(), NT, lds_size, 128


def gen_k2(p):
    NT = 1024
    NR = 10
    NS = NR + 2
    D = p.D
    a = Asm()
    a.prof = 3 if p.prof else None
    name = "gather_scatter__molecular_angular_gemnet__graph_kernel"
    PSTR = 5120
    ACC = 0
    ACCF = 6 * PSTR
    FLAG = 2 * ACCF
    SCR = 65536
    lds_size = SCR + 16 * 512
    ld = p.ld2

    vT8 = 1
    vLane = 2
    vA = 4
    vANG = 14
    vMETA = 19
    vRR = [20, 22]
    vM = 24
    vG = 48
    vR = 60
    vME = 64
    vDIST = 66
    vWD, vWU, vZero = 67, 68, 69
    vT = 70
    nv_used = 128
    assert vT + 54 <= nv_used

    S_WS, S_M, S_OUT, S_ME = 4, 8, 20, 24
    S_DIST = 12
    sWAVE, sMODE = 30, 31
    sWSBF, sWRBF, sCEN = 32, 80, 96
    sRV = [0, 100]

    a.label(name)
    a("s_cmp_ge_u32 s2, %d" % NB)
    a("s_cbranch_scc1 L_k2_exit")
    if p.prof:
        a("s_memrealtime s[96:97]")
    a("s_load_dwordx16 s[8:23], s[0:1], 40")
    a("s_load_dwordx2 s[24:25], s[0:1], 0")
    a("s_load_dwordx2 s[26:27], s[0:1], 24")
    a("s_load_dwordx2 s[28:29], s[0:1], 104")
    a("s_and_b32 s3, s2, 7")
    a("s_lshl_b32 s3, s3, 5")
    a("s_lshr_b32 s30, s2, 3")
    a("s_add_u32 s3, s3, s30")
    q = vT + 16
    a("v_and_b32 %s, 63, v0" % vr(vLane))
    a("v_lshrrev_b32 %s, 6, v0" % vr(q + 4))
    a("v_lshlrev_b32 %s, 4, v0" % vr(q + 5))
    a("v_lshlrev_b32 %s, 3, v0" % vr(vT8))
    a("v_mov_b32 %s, 0" % vr(vZero))
    a("v_readfirstlane_b32 s%d, %s" % (sWAVE, vr(q + 4)))
    for i in range(4):
        a("v_mov_b32 %s, 0" % vr(vT + 32 + i))
    for r in range(4):
        a("ds_write_b128 %s, %s offset:%d" % (vr(q + 5), vr(vT + 32, 4), r * 16384))
    a("v_add_u32 %s, %d, %s" % (vr(q + 6), SCR, vr(vT8)))
    a("ds_write_b64 %s, %s" % (vr(q + 6), vr(vT + 32, 2)))
    a("s_movk_i32 s100, 205")
    a("s_mov_b32 s101, %d" % (65536 - 160))
    for k in range(3):
        if k == 0:
            a("v_mov_b32 %s, %s" % (vr(q), vr(vLane)))
        elif k == 1:
            a("v_add_u32 %s, 64, %s" % (vr(q), vr(vLane)))
        else:
            a("v_lshrrev_b32 %s, 1, %s" % (vr(q), vr(vLane)))
            a("v_add_u32 %s, 128, %s" % (vr(q), vr(q)))
        a("v_mul_u32_u24 %s, s100, %s" % (vr(q + 1), vr(q)))
        a("v_lshrrev_b32 %s, 11, %s" % (vr(q + 1), vr(q + 1)))
        a("v_lshlrev_b32 %s, 4, %s" % (vr(q + 2), vr(q)))
        a("v_mad_u32_u24 %s, %s, s101, %s" % (vr(vT + k), vr(q + 1), vr(q + 2)))
        a("v_lshlrev_b32 %s, 3, %s" % (vr(q + 2), vr(q)))
        a("v_mul_u32_u24 %s, 80, %s" % (vr(q + 3), vr(q + 1)))
        a("v_mad_u32_u24 %s, %s, s101, %s" % (vr(vT + 8 + k), vr(q + 1), vr(q + 2)))
        a("v_add_u32 %s, %s, %s" % (vr(vT + 8 + k), vr(q + 3), vr(vT + 8 + k)))
        if k == 2:
            a("v_and_b32 %s, 1, %s" % (vr(q + 2), vr(vLane)))
            a("v_lshl_add_u32 %s, %s, 3, %s" % (vr(vT + k), vr(q + 2), vr(vT + k)))
            a("v_lshl_add_u32 %s, %s, 2, %s" % (vr(vT + 8 + k), vr(q + 2), vr(vT + 8 + k)))
    for qq in range(160):
        assert (qq * 205) >> 11 == qq // 10
    a("v_lshlrev_b32 %s, 16, %s" % (vr(vT + 3), vr(vLane)))
    a("v_lshlrev_b32 %s, 5, %s" % (vr(vT + 4), vr(vLane)))
    a("v_and_b32 %s, 7, v0" % vr(vT + 5))
    a("v_lshlrev_b32 %s, 2, %s" % (vr(vT + 5), vr(vT + 5)))
    a("v_lshlrev_b32 %s, 1, v0" % vr(vT + 6))
    a("v_mov_b32 %s, 0" % vr(vMETA))
    a("s_waitcnt lgkmcnt(0)")
    if p.prof:
        a("v_mov_b32 v3, 0")
        a("s_nop 0")
        a("v_writelane_b32 v3, s96, 0")
        a.stamp(1)
    srd(a, S_WS, 28, 29, None, WS_SIZE)
    a("s_lshl_b32 s28, s%d, 20" % sWAVE)
    a("s_lshl_b32 s29, s3, 8")
    a("s_add_u32 s28, s28, s29")
    a("s_mov_b32 s29, 0x%x" % WS_ST)

    def ld_main(k):
        if k < 2:
            a.vmem("buffer_load_dwordx4 %s, %s, %s, s28 offen %s" % (vr(vA + 4 * k, 4), vr(vT + k), sr(S_WS, 4), ld), "A%d" % k)
            a.vmem("buffer_load_dwordx2 %s, %s, %s, s28 offen offset:%d %s" % (vr(vANG + 2 * k, 2), vr(vT + 8 + k), sr(S_WS, 4), GOFF, ld), "ANG%d" % k)
        else:
            a.vmem("buffer_load_dwordx2 %s, %s, %s, s28 offen %s" % (vr(vA + 8, 2), vr(vT + k), sr(S_WS, 4), ld), "A2")
            a.vmem("buffer_load_dword %s, %s, %s, s28 offen offset:%d %s" % (vr(vANG + 4), vr(vT + 8 + k), sr(S_WS, 4), GOFF, ld), "ANG2")

    if p.k2_prio:
        a("s_setprio 3")
    if p.warm2:
        a("s_lshr_b32 s100, s2, 3")
        a("s_mul_i32 s100, s100, 40000")
        srd(a, 32, 24, 25, "s100", 40000)
        a("v_lshlrev_b32 %s, 4, v0" % vr(vT + 40))
        a("v_add_u32 %s, 16384, %s" % (vr(vT + 41), vr(vT + 40)))
        a("v_add_u32 %s, 32768, %s" % (vr(vT + 42), vr(vT + 40)))
        for i in range(3):
            a.vmem("buffer_load_dwordx4 %s, %s, s[32:35], 0 offen" % (vr(vT + 44 + 4 * (i % 2), 4) if False else vr(vM + 4 * i, 4), vr(vT + 40 + i)), "warm")
    ld_main(0)
    a.vmem("buffer_load_dwordx4 %s, %s, %s, s29 offen" % (vr(vT + 24, 4), vr(vT + 4), sr(S_WS, 4)), "ST")
    a.vmem("buffer_load_dwordx4 %s, %s, %s, s29 offen offset:16" % (vr(vT + 28, 4), vr(vT + 4), sr(S_WS, 4)), "ST")
    a("s_mov_b64 exec, 0xffff")
    a.vmem("buffer_load_dword %s, %s, %s, s28 offen offset:%d %s" % (vr(vMETA), vr(vT + 3), sr(S_WS, 4), MOFF, ld), "META")
    a("s_mov_b64 exec, -1")
    if not p.k2_latebar:
        a("s_barrier")
    ld_main(1)
    ld_main(2)
    a("s_load_dwordx16 s[32:47], s[14:15], 0")
    a("s_load_dwordx16 s[48:63], s[14:15], 64")
    a("s_load_dwordx16 s[64:79], s[14:15], 128")
    a("s_load_dwordx16 s[80:95], s[12:13], 0")
    a("s_load_dwordx4 s[96:99], s[8:9], 0")
    a.vmem("global_load_dword %s, %s, s[16:17]" % (vr(vWD), vr(vT + 5)), "wd")
    a.vmem("global_load_dword %s, %s, s[18:19]" % (vr(vWU), vr(vT + 5)), "wu")
    srd(a, S_M, 24, 25, None, E, stride=8)
    a("s_mul_i32 s28, s3, %d" % (EPB * 2))
    srd(a, S_DIST, 26, 27, "s28", EPB * 2)
    a("s_mul_i32 s28, s3, %d" % (EPB * 8))
    srd(a, S_OUT, 20, 21, "s28", EPB * 8)
    srd(a, S_ME, 24, 25, "s28", EPB * 8)
    a.vmem("buffer_load_ushort %s, %s, %s, 0 offen" % (vr(vDIST), vr(vT + 6), sr(S_DIST, 4)), "dist")
    a.vmem("buffer_load_dwordx2 %s, %s, %s, 0 offen" % (vr(vME, 2), vr(vT8), sr(S_ME, 4)), "me")
    if p.k2_prio and not p.prio_sched:
        a("s_setprio 0")
    if p.k2_latebar:
        a("s_barrier")
    a.stamp(2)

    idx_t = [vT + 16 + i for i in range(4)]
    gcount = [0]

    def srcA(r):
        return vA + r if r < NR else vRR[r - NR]

    def gather(r):
        it = idx_t[gcount[0] & 3]
        gcount[0] += 1
        a("v_lshrrev_b32 %s, 13, %s" % (vr(it), vr(srcA(r))))
        a.vmem("buffer_load_dwordx2 %s, %s, %s, 0 idxen" % (vr(vM + 2 * r, 2), vr(it), sr(S_M, 4)), "G%d" % r)

    issued = [0]

    def atag(r):
        if r < 4:
            return "A0"
        if r < 8:
            return "A1"
        if r < NR:
            return "A2"
        return "R%d" % (r - NR)

    cur_prio = [None]

    def gather_next():
        r = issued[0]
        a.wait_vm(atag(r))
        if p.prio_sched:
            pr = p.prio_sched[min(r, len(p.prio_sched) - 1)]
            if pr != cur_prio[0]:
                a("s_setprio %d" % pr)
                cur_prio[0] = pr
        gather(r)
        issued[0] += 1

    while issued[0] < min(D, 4):
        gather_next()
    a.stamp(3)
    t = vT + 24
    a.wait_vm("ST")
    a("v_pk_max_u16 %s, %s, %s" % (vr(t), vr(t), vr(t + 2)))
    a("v_pk_max_u16 %s, %s, %s" % (vr(t + 4), vr(t + 4), vr(t + 6)))
    a("v_add_f32 %s, %s, %s" % (vr(t + 1), vr(t + 1), vr(t + 3)))
    a("v_add_f32 %s, %s, %s" % (vr(t + 5), vr(t + 5), vr(t + 7)))
    a("v_pk_max_u16 %s, %s, %s" % (vr(t), vr(t), vr(t + 4)))
    a("v_add_f32 %s, %s, %s" % (vr(t + 1), vr(t + 1), vr(t + 5)))
    a("s_nop 0")
    a("v_lshrrev_b32 %s, 16, %s" % (vr(t + 2), vr(t)))
    a("v_and_b32 %s, 0xffff, %s" % (vr(t), vr(t)))
    dpp_multi(a, [("v_max_u32", t), ("v_add_f32", t + 1), ("v_max_u32", t + 2)])
    a("s_nop 0")
    vSC, vINV = vT + 50, vT + 51
    a("v_readlane_b32 s28, %s, 63" % vr(t))
    a("v_readlane_b32 s29, %s, 63" % vr(t + 1))
    a("v_readlane_b32 s%d, %s, 63" % (sMODE, vr(t + 2)))
    a("s_lshl_b32 s100, s28, 16")
    a("v_mov_b32 %s, 0x%x" % (vr(t + 3), f2u(640000.0 / 128.0)))
    a("v_mul_f32 %s, s100, %s" % (vr(t + 3), vr(t + 3)))
    a("s_lshr_b32 s28, s28, 7")
    a("v_cmp_ge_f32 vcc, s29, %s" % vr(t + 3))
    a("s_cmp_lt_u32 s%d, 0x4281" % sMODE)
    a("s_cselect_b32 s%d, 1, 0" % sMODE)
    a("s_cmp_gt_u32 s28, 16")
    a("s_cselect_b32 s%d, s%d, 0" % (sMODE, sMODE))
    a("s_cmp_lt_u32 s28, 255")
    a("s_cselect_b32 s%d, s%d, 0" % (sMODE, sMODE))
    a("s_cmp_lg_u64 vcc, 0")
    a("s_cselect_b32 s%d, s%d, 0" % (sMODE, sMODE))
    a("s_sub_u32 s29, 270, s28")
    a("s_lshl_b32 s29, s29, 23")
    a("s_sub_u32 s28, s28, 16")
    a("s_lshl_b32 s28, s28, 23")
    a("v_mov_b32 %s, s29" % vr(vSC))
    a("v_mov_b32 %s, s28" % vr(vINV))
    if p.force_slow:
        a("s_mov_b32 s%d, 0" % sMODE)
    a.stamp(4)
    a.wait_vm("META")
    a("v_and_b32 %s, 0xffff, %s" % (vr(t), vr(vMETA)))
    a("v_lshrrev_b32 %s, 16, %s" % (vr(t + 1), vr(vMETA)))
    a("v_mov_b32 %s, %s" % (vr(t + 2), vr(t)))
    a("s_mul_i32 s28, s%d, %d" % (sWAVE, 16 * RSTR))
    a("s_add_u32 s28, s28, 0x%x" % WS_R)
    a("s_mov_b32 s29, %d" % RSTR)
    dpp_multi(a, [("v_add_u32", t + 2)], DPP_STEPS[:4])
    a("v_mov_b32 %s, s28" % vr(t + 4))
    a("v_mad_u32_u24 %s, %s, s29, %s" % (vr(t + 4), vr(vLane), vr(t + 4)))
    a("v_readlane_b32 s29, %s, 15" % vr(t + 2))
    a("v_sub_u32 %s, %s, %s" % (vr(t + 3), vr(t + 2), vr(t)))
    a("v_sub_u32 %s, %s, %s" % (vr(t + 1), vr(t + 1), vr(t + 3)))
    a("v_lshl_add_u32 %s, %s, 3, %s" % (vr(t + 4), vr(t + 1), vr(t + 4)))
    a("s_lshl_b32 s28, s%d, 9" % sWAVE)
    a("s_add_u32 s28, s28, %d" % SCR)
    a("v_lshl_add_u32 %s, %s, 2, s28" % (vr(t + 5), vr(t + 3)))
    a("v_lshl_add_u32 %s, %s, 2, s28" % (vr(t + 6), vr(vLane)))
    a("v_cmp_lt_u32 vcc, 0, %s" % vr(t))
    a("s_movk_i32 s100, 128")
    a("v_cmp_gt_u32 %s, s100, %s" % (sr(0, 2), vr(t + 3)))
    a("s_and_b64 exec, vcc, s[0:1]")
    a("ds_write_b32 %s, %s" % (vr(t + 5), vr(t + 4)))
    a("s_mov_b64 exec, -1")
    a("ds_read2_b32 %s, %s offset0:0 offset1:64" % (vr(t + 8, 2), vr(t + 6)))
    a("v_lshlrev_b32 %s, 3, %s" % (vr(t + 7), vr(vLane)))
    a("v_add_u32 %s, 64, %s" % (vr(t + 10), vr(vLane)))
    a("s_cmp_gt_u32 s29, 128")
    a("s_cselect_b32 s28, 2, 0")
    a("s_cselect_b32 s29, 0, s29")
    a("s_or_b32 s%d, s%d, s28" % (sMODE, sMODE))
    a("v_cmp_gt_u32 %s, s29, %s" % (sr(sRV[0], 2), vr(vLane)))
    a("v_cmp_gt_u32 %s, s29, %s" % (sr(sRV[1], 2), vr(t + 10)))
    a("s_waitcnt lgkmcnt(0)")
    dpp_multi(a, [("v_max_u32", t + 8), ("v_max_u32", t + 9)])
    a("s_nop 0")
    a("v_readlane_b32 s28, %s, 63" % vr(t + 8))
    a("v_add_u32 %s, %s, %s" % (vr(t + 8), vr(t + 8), vr(t + 7)))
    a("v_bfrev_b32 %s, 1" % vr(t + 11))
    a("v_max_u32 %s, s28, %s" % (vr(t + 9), vr(t + 9)))
    a("v_add_u32 %s, %s, %s" % (vr(t + 9), vr(t + 9), vr(t + 7)))
    a("v_cndmask_b32 %s, %s, %s, %s" % (vr(t + 8), vr(t + 11), vr(t + 8), sr(sRV[0], 2)))
    a("v_cndmask_b32 %s, %s, %s, %s" % (vr(t + 9), vr(t + 11), vr(t + 9), sr(sRV[1], 2)))
    a.vmem("buffer_load_dwordx2 %s, %s, %s, 0 offen" % (vr(vRR[0], 2), vr(t + 8), sr(S_WS, 4)), "R0")
    a.vmem("buffer_load_dwordx2 %s, %s, %s, 0 offen offset:512" % (vr(vRR[1], 2), vr(t + 9), sr(S_WS, 4)), "R1")
    a.stamp(5)
    while issued[0] < min(D, NR):
        gather_next()
    a.stamp(6)

    a.wait_vm("me")
    a("s_waitcnt lgkmcnt(0)")
    a("s_cmp_gt_u32 s%d, 9" % sWAVE)
    a("s_cbranch_scc1 L_k2_nopro")
    rb = vT + 24
    u = vT + 32
    a("v_lshlrev_b32 %s, 16, %s" % (vr(vDIST), vr(vDIST)))

    def rnd_pair(x0, x1, tp):
        a("v_cvt_pk_bf16_f32 %s, %s, %s" % (vr(tp), vr(x0), vr(x1)))

    def rnd_all():
        for i in range(4):
            a("v_cvt_pk_bf16_f32 %s, %s, %s" % (vr(u + i), vr(rb + 2 * i), vr(rb + 2 * i + 1)))
        for i in range(4):
            a("v_lshlrev_b32 %s, 16, %s" % (vr(rb + 2 * i), vr(u + i)))
            a("v_and_b32 %s, 0xffff0000, %s" % (vr(rb + 2 * i + 1), vr(u + i)))

    for i in range(4):
        a("s_lshl_b32 s28, s%d, 16" % (sCEN + i))
        a("s_and_b32 s29, s%d, 0xffff0000" % (sCEN + i))
        a("v_subrev_f32 %s, s28, %s" % (vr(rb + 2 * i), vr(vDIST)))
        a("v_subrev_f32 %s, s29, %s" % (vr(rb + 2 * i + 1), vr(vDIST)))
    rnd_all()
    for i in range(8):
        a("v_mul_f32 %s, %s, %s" % (vr(rb + i), vr(rb + i), vr(rb + i)))
    rnd_all()
    for i in range(8):
        a("v_mul_f32 %s, 0x%x, %s" % (vr(rb + i), f2u(-10.0), vr(rb + i)))
    rnd_all()
    for i in range(8):
        a("v_mul_f32 %s, 0x%x, %s" % (vr(rb + i), f2u(math.log2(math.e)), vr(rb + i)))
    for i in range(8):
        a("v_exp_f32 %s, %s" % (vr(rb + i), vr(rb + i)))
    a("s_nop 0")
    rnd_all()
    for r in range(8):
        for l in range(3):
            row = 3 * r + l
            for h in range(2):
                sw = sWSBF + 2 * row + h
                a("s_lshl_b32 s28, s%d, 16" % sw)
                a("s_and_b32 s29, s%d, 0xffff0000" % sw)
                dst = vG + 4 * l + 2 * h
                src = rb + (r & ~1)
                o = r & 1
                if r == 0:
                    a("v_pk_mul_f32 %s, %s, s[28:29] op_sel:[%d,0] op_sel_hi:[%d,1]" % (vr(dst, 2), vr(src, 2), o, o))
                else:
                    a("v_pk_fma_f32 %s, %s, s[28:29], %s op_sel:[%d,0,0] op_sel_hi:[%d,1,1]" % (vr(dst, 2), vr(src, 2), vr(dst, 2), o, o))
        for h in range(2):
            sw = sWRBF + 2 * r + h
            a("s_lshl_b32 s28, s%d, 16" % sw)
            a("s_and_b32 s29, s%d, 0xffff0000" % sw)
            dst = vR + 2 * h
            src = rb + (r & ~1)
            o = r & 1
            if r == 0:
                a("v_pk_mul_f32 %s, %s, s[28:29] op_sel:[%d,0] op_sel_hi:[%d,1]" % (vr(dst, 2), vr(src, 2), o, o))
            else:
                a("v_pk_fma_f32 %s, %s, s[28:29], %s op_sel:[%d,0,0] op_sel_hi:[%d,1,1]" % (vr(dst, 2), vr(src, 2), vr(dst, 2), o, o))
    a.label("L_k2_nopro")
    a.stamp(7)
    sMAG, sNEG, sSC, sNSC, sINV, sI2P, s3P, sHM = 32, 34, 36, 38, 40, 42, 44, 46
    sWDf, sWUf = 48, 64
    a("s_mov_b32 s%d, 0x4b400000" % sMAG)
    a("s_mov_b32 s%d, 0x4b400000" % (sMAG + 1))
    a("s_mov_b32 s%d, 0xb4c00000" % sNEG)
    a("s_mov_b32 s%d, 0xb4bfffff" % (sNEG + 1))
    a("v_readfirstlane_b32 s%d, %s" % (sSC, vr(vSC)))
    a("v_readfirstlane_b32 s%d, %s" % (sINV, vr(vINV)))
    a("s_mov_b32 s%d, 0x%x" % (sI2P, INV2PI))
    a("s_mov_b32 s%d, 0x%x" % (sI2P + 1, INV2PI))
    a("s_mov_b32 s%d, 0x40400000" % s3P)
    a("s_mov_b32 s%d, 0x40400000" % (s3P + 1))
    a("s_mov_b32 s%d, 0xffff0000" % sHM)
    a("s_mov_b32 s%d, s%d" % (sSC + 1, sSC))
    a("s_xor_b32 s%d, s%d, 0x80000000" % (sNSC, sSC))
    a("s_xor_b32 s%d, s%d, 0x80000000" % (sNSC + 1, sSC))
    a("s_mov_b32 s%d, s%d" % (sINV + 1, sINV))
    for i in range(8):
        a("v_readlane_b32 s%d, %s, %d" % (80 + i, vr(vWD), i))
        a("v_readlane_b32 s%d, %s, %d" % (88 + i, vr(vWU), i))
    for i in range(8):
        a("s_lshl_b32 s%d, s%d, 16" % (sWDf + 2 * i, 80 + i))
        a("s_and_b32 s%d, s%d, s%d" % (sWDf + 2 * i + 1, 80 + i, sHM))
        a("s_lshl_b32 s%d, s%d, 16" % (sWUf + 2 * i, 88 + i))
        a("s_and_b32 s%d, s%d, s%d" % (sWUf + 2 * i + 1, 88 + i, sHM))
    a("s_bitcmp0_b32 s%d, 0" % sMODE)
    a("s_cbranch_scc1 L_k2_slow")
    a.stamp(8)

    c0 = vT + 20
    AA, T3, RV, C1, C3, C1S, C2S, C3S = [c0 + 2 * i for i in range(8)]
    PK = vT + 36
    MF = vT + 38
    PRD = vT + 42
    AD = vT + 37

    def angle_math(src_dw, src_hi=None):
        if src_hi is not None:
            a("v_lshlrev_b32 %s, 16, %s" % (vr(AA), vr(src_dw)))
            a("v_lshlrev_b32 %s, 16, %s" % (vr(AA + 1), vr(src_hi)))
        else:
            a("v_lshlrev_b32 %s, 16, %s" % (vr(AA), vr(src_dw)))
            a("v_and_b32 %s, s%d, %s" % (vr(AA + 1), sHM, vr(src_dw)))
        a("v_pk_mul_f32 %s, %s, %s" % (vr(T3, 2), vr(AA, 2), sr(s3P, 2)))
        a("v_pk_mul_f32 %s, %s, %s" % (vr(RV, 2), vr(AA, 2), sr(sI2P, 2)))
        a("v_cvt_pk_bf16_f32 %s, %s, %s" % (vr(PK), vr(T3), vr(T3 + 1)))
        a("v_cos_f32 %s, %s" % (vr(C1), vr(RV)))
        a("v_cos_f32 %s, %s" % (vr(C1 + 1), vr(RV + 1)))
        a("v_lshlrev_b32 %s, 16, %s" % (vr(T3), vr(PK)))
        a("v_and_b32 %s, s%d, %s" % (vr(T3 + 1), sHM, vr(PK)))
        a("v_pk_mul_f32 %s, %s, %s" % (vr(C1S, 2), vr(C1, 2), sr(sSC, 2)))
        a("v_pk_mul_f32 %s, %s, %s" % (vr(RV, 2), vr(T3, 2), sr(sI2P, 2)))
        a("v_pk_add_f32 %s, %s, %s" % (vr(AA, 2), vr(C1, 2), vr(C1, 2)))
        a("v_cos_f32 %s, %s" % (vr(C3), vr(RV)))
        a("v_cos_f32 %s, %s" % (vr(C3 + 1), vr(RV + 1)))
        a("v_pk_fma_f32 %s, %s, %s, %s" % (vr(C2S, 2), vr(C1S, 2), vr(AA, 2), sr(sNSC, 2)))
        a("v_pk_mul_f32 %s, %s, %s" % (vr(C3S, 2), vr(C3, 2), sr(sSC, 2)))

    def process(r, half):
        src = srcA(r)
        m = vM + 2 * r
        a("v_and_b32 %s, 0x1ff8, %s" % (vr(AD), vr(src)))
        a.wait_vm("G%d" % r)
        a("v_lshlrev_b32 %s, 16, %s" % (vr(MF), vr(m)))
        a("v_and_b32 %s, s%d, %s" % (vr(MF + 1), sHM, vr(m)))
        a("v_lshlrev_b32 %s, 16, %s" % (vr(MF + 2), vr(m + 1)))
        a("v_and_b32 %s, s%d, %s" % (vr(MF + 3), sHM, vr(m + 1)))
        cs = [C1S, C2S, C3S]
        for l in range(3):
            for h in range(2):
                d = PRD + 4 * l + 2 * h
                a("v_pk_fma_f32 %s, %s, %s, %s op_sel:[0,%d,0] op_sel_hi:[1,%d,1]" % (vr(d, 2), vr(MF + 2 * h, 2), vr(cs[l], 2), sr(sMAG, 2), half, half))
        for i in range(6):
            d = PRD + 2 * i
            a("v_lshl_add_u64 %s, %s, 0, %s" % (vr(d, 2), vr(d, 2), sr(sNEG, 2)))
        if r < NR:
            a("v_cmpx_ne_u32 vcc, -1, %s" % vr(src))
        else:
            a("s_mov_b64 exec, %s" % sr(sRV[r - NR], 2))
        for i in range(6 if not p.no_atom else 0):
            a("ds_add_u64 %s, %s offset:%d" % (vr(AD), vr(PRD + 2 * i, 2), ACC + i * PSTR))
        a("s_mov_b64 exec, -1")

    for r in range(NR):
        if r % 2 == 0:
            k = min(r // 4, 2)
            a.wait_vm("ANG%d" % k)
            angle_math(vANG + r // 2)
        if issued[0] < NS:
            gather_next()
        process(r, r % 2)
        if r in (3, 7, 9):
            a.stamp(9 + r // 4)
    while issued[0] < NS:
        gather_next()
    a("s_cmp_eq_u64 %s, 0" % sr(sRV[0], 2))
    a("s_cbranch_scc1 L_k2_norem")
    angle_math(vRR[0] + 1, vRR[1] + 1)
    process(NR, 0)
    a("s_cmp_eq_u64 %s, 0" % sr(sRV[1], 2))
    a("s_cbranch_scc1 L_k2_norem")
    process(NR + 1, 1)
    a.label("L_k2_norem")
    a.stamp(12)
    a("s_bitcmp1_b32 s%d, 1" % sMODE)
    a("s_cbranch_scc1 L_k2_sp_rem")
    a.label("L_k2_fastdone")
    a("s_waitcnt lgkmcnt(0)")
    a.stamp(14)
    a("s_barrier")
    a.stamp(15)
    a("s_cmp_gt_u32 s%d, 9" % sWAVE)
    a("s_cbranch_scc1 L_k2_end")
    SS = vT + 20
    a("ds_read_b32 %s, %s offset:%d" % (vr(vT + 16), vr(vZero), FLAG))
    for i in range(6):
        a("ds_read_b64 %s, %s offset:%d" % (vr(SS + 2 * i, 2), vr(vT8), ACC + i * PSTR))
    a("s_waitcnt lgkmcnt(0)")
    a("v_readfirstlane_b32 s28, %s" % vr(vT + 16))
    for i in range(6):
        a("v_ashrrev_i32 %s, 31, %s" % (vr(vT + 32 + i), vr(SS + 2 * i)))
    for i in range(6):
        a("v_sub_u32 %s, %s, %s" % (vr(SS + 2 * i + 1), vr(SS + 2 * i + 1), vr(vT + 32 + i)))
    for i in range(12):
        a("v_cvt_f32_i32 %s, %s" % (vr(SS + i), vr(SS + i)))
    for i in range(6):
        a("v_pk_mul_f32 %s, %s, %s" % (vr(SS + 2 * i, 2), vr(SS + 2 * i, 2), sr(sINV, 2)))
    a("s_cmp_eq_u32 s28, 0")
    a("s_cbranch_scc1 L_k2_epi")
    for i in range(6):
        a("ds_read_b64 %s, %s offset:%d" % (vr(vT + 32 + 2 * i, 2), vr(vT8), ACCF + i * PSTR))
    a("s_waitcnt lgkmcnt(0)")
    for i in range(6):
        a("v_pk_add_f32 %s, %s, %s" % (vr(SS + 2 * i, 2), vr(SS + 2 * i, 2), vr(vT + 32 + 2 * i, 2)))
    a.label("L_k2_epi")
    SP = vT + 32
    for l in range(3):
        for jh in range(2):
            d = SP + 4 * l + 2 * jh
            for i in range(4):
                src = SS + 4 * l + (i & ~1)
                o = i & 1
                w = sWDf + 4 * i + 2 * jh
                if i == 0:
                    a("v_pk_mul_f32 %s, %s, %s op_sel:[%d,0] op_sel_hi:[%d,1]" % (vr(d, 2), vr(src, 2), sr(w, 2), o, o))
                else:
                    a("v_pk_fma_f32 %s, %s, %s, %s op_sel:[%d,0,0] op_sel_hi:[%d,1,1]" % (vr(d, 2), vr(src, 2), sr(w, 2), vr(d, 2), o, o))
    AG = vT + 44
    for jh in range(2):
        d = AG + 2 * jh
        for l in range(3):
            if l == 0:
                a("v_pk_mul_f32 %s, %s, %s" % (vr(d, 2), vr(SP + 2 * jh, 2), vr(vG + 2 * jh, 2)))
            else:
                a("v_pk_fma_f32 %s, %s, %s, %s" % (vr(d, 2), vr(SP + 4 * l + 2 * jh, 2), vr(vG + 4 * l + 2 * jh, 2), vr(d, 2)))
    UP = vT + 48
    for kh in range(2):
        d = UP + 2 * kh
        for j in range(4):
            src = AG + (j & ~1)
            o = j & 1
            w = sWUf + 4 * j + 2 * kh
            if j == 0:
                a("v_pk_mul_f32 %s, %s, %s op_sel:[%d,0] op_sel_hi:[%d,1]" % (vr(d, 2), vr(src, 2), sr(w, 2), o, o))
            else:
                a("v_pk_fma_f32 %s, %s, %s, %s op_sel:[%d,0,0] op_sel_hi:[%d,1,1]" % (vr(d, 2), vr(src, 2), sr(w, 2), vr(d, 2), o, o))
    MEF = vT + 20
    a("v_lshlrev_b32 %s, 16, %s" % (vr(MEF), vr(vME)))
    a("v_and_b32 %s, s%d, %s" % (vr(MEF + 1), sHM, vr(vME)))
    a("v_lshlrev_b32 %s, 16, %s" % (vr(MEF + 2), vr(vME + 1)))
    a("v_and_b32 %s, s%d, %s" % (vr(MEF + 3), sHM, vr(vME + 1)))
    for kh in range(2):
        a("v_pk_fma_f32 %s, %s, %s, %s" % (vr(UP + 2 * kh, 2), vr(UP + 2 * kh, 2), vr(vR + 2 * kh, 2), vr(MEF + 2 * kh, 2)))
    a("s_nop 0")
    a("v_cvt_pk_bf16_f32 %s, %s, %s" % (vr(AG), vr(UP), vr(UP + 1)))
    a("v_cvt_pk_bf16_f32 %s, %s, %s" % (vr(AG + 1), vr(UP + 2), vr(UP + 3)))
    a("buffer_store_dwordx2 %s, %s, %s, 0 offen" % (vr(AG, 2), vr(vT8), sr(S_OUT, 4)))
    if p.prof:
        a.stamp(16)
        a("s_waitcnt vmcnt(0)")
        a.stamp(17)
        a("s_branch L_k2_end")
    else:
        a("s_endpgm")

    sC_HI, sC_LO = 80, 81
    X = vT + 20
    H = vT + 24
    L_ = vT + 28
    Cc = vT + 32
    SM = vT + 36
    SAD = vT + 16
    SI = vT + 17

    def slow_rec(vsrcA, ang_lo, vang, maskmode):
        a("v_lshrrev_b32 %s, 13, %s" % (vr(SI), vr(vsrcA)))
        a("buffer_load_dwordx2 %s, %s, %s, 0 idxen" % (vr(SM, 2), vr(SI), sr(S_M, 4)))
        a("v_and_b32 %s, 0x1ff8, %s" % (vr(SAD), vr(vsrcA)))
        if ang_lo:
            a("v_lshlrev_b32 %s, 16, %s" % (vr(X), vr(vang)))
        else:
            a("v_and_b32 %s, s%d, %s" % (vr(X), sHM, vr(vang)))
        a("v_add_f32 %s, %s, %s" % (vr(X + 1), vr(X), vr(X)))
        a("v_mul_f32 %s, s%d, %s" % (vr(X + 2), s3P, vr(X)))
        a("v_cvt_pk_bf16_f32 %s, %s, %s" % (vr(X + 2), vr(X + 2), vr(X + 2)))
        a("s_nop 0")
        a("v_lshlrev_b32 %s, 16, %s" % (vr(X + 2), vr(X + 2)))
        for i in range(3):
            a("v_mul_f32 %s, s%d, %s" % (vr(H + i), sC_HI, vr(X + i)))
        for i in range(3):
            a("v_fma_f32 %s, %s, s%d, -%s" % (vr(L_ + i), vr(X + i), sC_HI, vr(H + i)))
        for i in range(3):
            a("v_fma_f32 %s, %s, s%d, %s" % (vr(L_ + i), vr(X + i), sC_LO, vr(L_ + i)))
        for i in range(3):
            a("v_fract_f32 %s, %s" % (vr(H + i), vr(H + i)))
        for i in range(3):
            a("v_add_f32 %s, %s, %s" % (vr(H + i), vr(H + i), vr(L_ + i)))
        for i in range(3):
            a("v_cos_f32 %s, %s" % (vr(Cc + i), vr(H + i)))
        a("s_waitcnt vmcnt(0)")
        a("v_lshlrev_b32 %s, 16, %s" % (vr(MF), vr(SM)))
        a("v_and_b32 %s, s%d, %s" % (vr(MF + 1), sHM, vr(SM)))
        a("v_lshlrev_b32 %s, 16, %s" % (vr(MF + 2), vr(SM + 1)))
        a("v_and_b32 %s, s%d, %s" % (vr(MF + 3), sHM, vr(SM + 1)))
        for l in range(3):
            for h in range(2):
                d = PRD + 4 * l + 2 * h
                src = Cc + (l & ~1)
                o = l & 1
                a("v_pk_mul_f32 %s, %s, %s op_sel:[0,%d] op_sel_hi:[1,%d]" % (vr(d, 2), vr(MF + 2 * h, 2), vr(src, 2), o, o))
        if maskmode == "A":
            a("v_cmpx_ne_u32 vcc, -1, %s" % vr(vsrcA))
        for l in range(3):
            for i in range(4):
                a("ds_add_f32 %s, %s offset:%d" % (vr(SAD), vr(PRD + 4 * l + i), ACCF + (2 * l + i // 2) * PSTR + 4 * (i & 1)))
        if maskmode == "A":
            a("s_mov_b64 exec, -1")

    a.label("L_k2_slow")
    a("s_waitcnt vmcnt(0)")
    a("s_mov_b32 s%d, 0x%x" % (sC_HI, INV2PI))
    a("s_mov_b32 s%d, 0x%x" % (sC_LO, INV2PI_LO))
    for r in range(NR):
        slow_rec(vA + r, r % 2 == 0, vANG + r // 2, "A")
    a.label("L_k2_sp_rem")
    a("s_waitcnt vmcnt(0)")
    a("s_mov_b32 s%d, 0x%x" % (sC_HI, INV2PI))
    a("s_mov_b32 s%d, 0x%x" % (sC_LO, INV2PI_LO))
    a("v_mov_b32 %s, 1" % vr(vT + 18))
    a("ds_write_b32 %s, %s offset:%d" % (vr(vZero), vr(vT + 18), FLAG))
    sP, sEnt, sRem, sBase, sI = 82, 83, 84, 85, 86
    a("s_mov_b32 s%d, 0" % sP)
    a.label("L_k2_sp_piece")
    a("s_nop 0")
    a("v_readlane_b32 s%d, %s, s%d" % (sEnt, vr(vMETA), sP))
    a("s_lshl_b32 s87, s%d, 4" % sWAVE)
    a("s_add_u32 s87, s87, s%d" % sP)
    a("s_mul_i32 s87, s87, %d" % RSTR)
    a("s_and_b32 s%d, s%d, 0xffff" % (sRem, sEnt))
    a("s_lshr_b32 s%d, s%d, 16" % (sBase, sEnt))
    a("s_lshl_b32 s%d, s%d, 3" % (sBase, sBase))
    a("s_add_u32 s%d, s%d, s87" % (sBase, sBase))
    a("s_add_u32 s%d, s%d, 0x%x" % (sBase, sBase, WS_R))
    a("s_mov_b32 s%d, 0" % sI)
    a.label("L_k2_sp_batch")
    a("s_cmp_ge_u32 s%d, s%d" % (sI, sRem))
    a("s_cbranch_scc1 L_k2_sp_next")
    a("v_add_u32 %s, s%d, %s" % (vr(vT + 19), sI, vr(vLane)))
    a("v_cmp_gt_u32 vcc, s%d, %s" % (sRem, vr(vT + 19)))
    a("v_lshlrev_b32 %s, 3, %s" % (vr(vT + 19), vr(vT + 19)))
    a("v_add_u32 %s, s%d, %s" % (vr(vT + 19), sBase, vr(vT + 19)))
    a("s_mov_b64 exec, vcc")
    a("buffer_load_dwordx2 %s, %s, %s, 0 offen" % (vr(vRR[0], 2), vr(vT + 19), sr(S_WS, 4)))
    a("s_waitcnt vmcnt(0)")
    slow_rec(vRR[0], True, vRR[0] + 1, "none")
    a("s_mov_b64 exec, -1")
    a("s_add_u32 s%d, s%d, 64" % (sI, sI))
    a("s_branch L_k2_sp_batch")
    a.label("L_k2_sp_next")
    a("s_add_u32 s%d, s%d, 1" % (sP, sP))
    a("s_cmp_lt_u32 s%d, 16" % sP)
    a("s_cbranch_scc1 L_k2_sp_piece")
    a("s_bitcmp1_b32 s%d, 0" % sMODE)
    a("s_cbranch_scc1 L_k2_fastdone")
    a("s_waitcnt lgkmcnt(0)")
    a("s_barrier")
    a("s_cmp_gt_u32 s%d, 9" % sWAVE)
    a("s_cbranch_scc1 L_k2_end")
    for i in range(6):
        a("ds_read_b64 %s, %s offset:%d" % (vr(SS + 2 * i, 2), vr(vT8), ACCF + i * PSTR))
    a("s_waitcnt lgkmcnt(0)")
    a("s_branch L_k2_epi")
    a.label("L_k2_end")
    a.stamp_store(S_WS, 60 << 20, vT, "s30", stmp="s28")
    a.label("L_k2_exit")
    a("s_endpgm")
    return name, a.text(), NT, lds_size, nv_used


def kernel_desc(name, nv, ns=102):
    acc = (nv + 3) // 4 * 4
    return """.amdhsa_kernel %s
  .amdhsa_next_free_vgpr %d
  .amdhsa_next_free_sgpr %d
  .amdhsa_accum_offset %d
  .amdhsa_group_segment_fixed_size 0
  .amdhsa_kernarg_size 112
  .amdhsa_user_sgpr_count 2
  .amdhsa_user_sgpr_kernarg_segment_ptr 1
  .amdhsa_system_sgpr_workgroup_id_x 1
  .amdhsa_float_denorm_mode_32 3
.end_amdhsa_kernel
""" % (name, nv, ns, acc)


def main():
    ap = argparse.ArgumentParser()
    ap.add_argument("-o", default="gather_scatter__molecular_angular_gemnet__graph.s")
    ap.add_argument("--D", type=int, default=4)
    ap.add_argument("--st", default="")
    ap.add_argument("--force_slow", action="store_true")
    ap.add_argument("--prof", action="store_true")
    ap.add_argument("--ld1", default="nt")
    ap.add_argument("--ld2", default="")
    ap.add_argument("--k1_pre", type=int, default=0)
    ap.add_argument("--meta4", type=int, default=0)
    ap.add_argument("--k2_prio", type=int, default=0)
    ap.add_argument("--k2_latebar", type=int, default=0)
    ap.add_argument("--k1_init_first", type=int, default=0)
    ap.add_argument("--prio_sched", default="")
    ap.add_argument("--no_atom", type=int, default=0)
    ap.add_argument("--warm2", type=int, default=0)
    p = ap.parse_args()
    p.prio_sched = [int(x) for x in p.prio_sched.split(",")] if p.prio_sched else []
    p.st_flags = p.st.replace("+", " ")
    p.ld1 = p.ld1.replace("+", " ")
    p.ld2 = p.ld2.replace("+", " ")
    n1, t1, nt1, lds1, nv1 = gen_k1(p)
    n2, t2, nt2, lds2, nv2 = gen_k2(p)
    out = []
    out.append("; @launch kernel=%s grid=(256,1,1) block=(%d,1,1) lds=%d" % (n1, nt1, lds1))
    out.append("; @launch kernel=%s grid=(256,1,1) block=(%d,1,1) lds=%d" % (n2, nt2, lds2))
    out.append('.amdgcn_target "amdgcn-amd-amdhsa--gfx950"')
    out.append(".text")
    for n, t in ((n1, t1), (n2, t2)):
        out.append(".globl %s" % n)
        out.append(".p2align 8")
        out.append(".type %s,@function" % n)
        out.append(t)
    out.append('.section .rodata,"a"')
    out.append(".p2align 6")
    out.append(kernel_desc(n1, nv1))
    out.append(".p2align 6")
    out.append(kernel_desc(n2, nv2))
    open(p.o, "w").write("\n".join(out))


if __name__ == "__main__":
    main()
```
